```python
import torch

def _softmax(x, axis=-1):
    return torch.softmax(x, dim=axis)
def _gelu(x):
    return torch.nn.functional.gelu(x, approximate="tanh")
def _silu(x):
    return torch.nn.functional.silu(x)
def _sigmoid(x):
    return torch.sigmoid(x)
def _layernorm(x, axis=-1, eps=1e-5):
    m = x.mean(dim=axis, keepdim=True)
    v = x.var(dim=axis, keepdim=True, unbiased=False)
    return (x - m) / torch.sqrt(v + eps)
def _scatter_add(tgt, idx, src, axis=0):
    return tgt.clone().index_add_(axis, idx, src)
def _segment_sum(src, seg, n):
    out = torch.zeros((n,) + src.shape[1:], dtype=src.dtype)
    return out.index_add_(0, seg, src)
def _pad(x, pw):
    flat = tuple(v for pair in reversed(pw) for v in pair)
    return torch.nn.functional.pad(x, flat)

kernel_name = 'recurrent_scan__ssm_conv_s5__glu_gated_glu__prompt'

def setup_inputs():

    _w = (lambda a: (lambda t: t.to(torch.bfloat16) if t.is_floating_point() else t)(torch.as_tensor(a)))
    def _A_setup():
        B, S, D = 1, 2048, 512
        P = D
        Lambda_re = -0.5 * (lambda _x: torch.exp(torch.as_tensor(_x)))((lambda *s: torch.randn(*s, dtype=torch.bfloat16) * 0.2)(P))
        Lambda_im = (lambda *s: torch.randn(*s, dtype=torch.bfloat16) * 0.4)(P) * 1.0
        B_re = (lambda *s: torch.randn(*s, dtype=torch.bfloat16) * 0.2)(P, D) * (D ** -0.5)
        B_im = (lambda *s: torch.randn(*s, dtype=torch.bfloat16) * 0.2)(P, D) * (D ** -0.5)
        C_re = (lambda *s: torch.randn(*s, dtype=torch.bfloat16) * 0.2)(D, P) * (P ** -0.5)
        C_im = (lambda *s: torch.randn(*s, dtype=torch.bfloat16) * 0.2)(D, P) * (P ** -0.5)
        log_dt = (lambda *s: torch.randn(*s, dtype=torch.bfloat16) * 0.2)(P) * 0.3 - 2.0
        Dskip = (lambda *s: torch.randn(*s, dtype=torch.bfloat16) * 0.05)(D)
        return {
            "x": _w((lambda *s: torch.randn(*s, dtype=torch.bfloat16) * 0.05)(B, S, D)),
            "Lambda_re": _w(Lambda_re),
            "Lambda_im": _w(Lambda_im),
            "B_re": _w(B_re),
            "B_im": _w(B_im),
            "C_re": _w(C_re),
            "C_im": _w(C_im),
            "log_dt": _w(log_dt),
            "Dskip": _w(Dskip),
        }
    _A_in = _A_setup()

    def _B_setup():
        B, S, D, F = 1, 2048, 512, 1792
        return {
            "x": _w((lambda *s: torch.randn(*s, dtype=torch.bfloat16) * 0.05)(B, S, D)),
            "w_gate": _w((lambda *s: torch.randn(*s, dtype=torch.bfloat16) * 0.05)(D, F)),
            "w_up": _w((lambda *s: torch.randn(*s, dtype=torch.bfloat16) * 0.05)(D, F)),
            "w_down": _w((lambda *s: torch.randn(*s, dtype=torch.bfloat16) * 0.05)(F, D)),
        }
    _B_in = _B_setup()

    return {
        "A_x": _A_in["x"],
        "A_Lambda_re": _A_in["Lambda_re"],
        "A_Lambda_im": _A_in["Lambda_im"],
        "A_B_re": _A_in["B_re"],
        "A_B_im": _A_in["B_im"],
        "A_C_re": _A_in["C_re"],
        "A_C_im": _A_in["C_im"],
        "A_log_dt": _A_in["log_dt"],
        "A_Dskip": _A_in["Dskip"],
        "B_x": _B_in["x"],
        "B_w_gate": _B_in["w_gate"],
        "B_w_up": _B_in["w_up"],
        "B_w_down": _B_in["w_down"],
    }

def reference(A_x, A_Lambda_re, A_Lambda_im, A_B_re, A_B_im, A_C_re, A_C_im, A_log_dt, A_Dskip, B_x, B_w_gate, B_w_up, B_w_down):
    def _A_ref(x, Lambda_re, Lambda_im, B_re, B_im, C_re, C_im, log_dt, Dskip):
        Bsz, L, H = x.shape
        Lam = Lambda_re + 1j * Lambda_im
        Bmat = B_re + 1j * B_im
        Cmat = C_re + 1j * C_im
        dt = torch.exp(log_dt)
        Lam_bar = torch.exp(dt * Lam)
        B_bar = ((Lam_bar - 1.0) / Lam)[:, None] * Bmat
        Bu = torch.einsum("bld,pd->blp", x + 0j, B_bar)
        h = torch.zeros_like(Bu[:, 0, :])
        hs = []
        for t in range(L):
            h = Lam_bar[None, :] * h + Bu[:, t, :]
            hs.append(h)
        hseq = torch.stack(hs, 1)
        y = 2.0 * torch.einsum("blp,dp->bld", hseq, Cmat).real + x * Dskip[None, None, :]
        return y

    def _B_ref(x, w_gate, w_up, w_down):
        g = torch.einsum("bsd,df->bsf", x, w_gate)
        u = torch.einsum("bsd,df->bsf", x, w_up)
        h = _sigmoid(g) * u
        return torch.einsum("bsf,fd->bsd", h, w_down)

    x = A_x
    xn = _layernorm(x, axis=-1)
    s = _A_ref(xn, A_Lambda_re, A_Lambda_im, A_B_re, A_B_im, A_C_re, A_C_im, A_log_dt, A_Dskip)
    g = _silu(_B_ref(xn, B_w_gate, B_w_up, B_w_down))
    return x + s * g
```

```python
import re


def V(n, cnt=1):
    return [('v', n + i) for i in range(cnt)]


def A(n, cnt=1):
    return [('a', n + i) for i in range(cnt)]


def S(n, cnt=1):
    return [('s', n + i) for i in range(cnt)]


def vr(n, cnt=1):
    return f"v{n}" if cnt == 1 else f"v[{n}:{n + cnt - 1}]"


def ar(n, cnt=1):
    return f"a{n}" if cnt == 1 else f"a[{n}:{n + cnt - 1}]"


def sr(n, cnt=1):
    return f"s{n}" if cnt == 1 else f"s[{n}:{n + cnt - 1}]"


_REG_RE = re.compile(r"\b([vas])(\d+)\b|\b([vas])\[(\d+):(\d+)\]|\b(vcc|exec|m0|scc)\b")


def parse_regs(txt):
    out = []
    for m in _REG_RE.finditer(txt):
        if m.group(1):
            out.append((m.group(1), int(m.group(2))))
        elif m.group(3):
            out += [(m.group(3), i) for i in range(int(m.group(4)), int(m.group(5)) + 1)]
        else:
            out.append((m.group(6), 0))
    return out


TRANS = ('v_exp_f32', 'v_log_f32', 'v_rcp_f32', 'v_rsq_f32', 'v_sqrt_f32', 'v_sin_f32', 'v_cos_f32')


class Asm:
    def __init__(self):
        self.lines = []
        self.pos = 0
        self.valu_w = {}
        self.trans_w = {}
        self.mfma_w = {}
        self.mfma_c = {}
        self.valu_sw = {}
        self.m0_w = -100
        self.dot_w = {}
        self.store_d = {}
        self.vm = []
        self.lg = []
        self.nops = 0

    def raw(self, txt):
        self.lines.append("    " + txt)

    def comment(self, txt):
        self.lines.append("    ; " + txt)

    def label(self, name):
        self.lines.append(name + ":")

    def nop(self, n):
        while n > 0:
            k = min(n, 16)
            self.lines.append(f"    s_nop {k - 1}")
            self.pos += k
            self.nops += k
            n -= k

    def _need(self, need):
        if need > 0:
            self.nop(need)

    def barrier_state(self):
        self.nop(16)

    def emit(self, txt, kind=None, defs=None, uses=None, srcc=None, tag=None):
        op = txt.split()[0]
        operands = txt[len(op):]
        ops_clean = re.sub(r"quad_perm:\[[^\]]*\]|row_mask:\S+|bank_mask:\S+|offset\d?:\S+|hwreg\([^)]*\)|vmcnt\(\d+\)|lgkmcnt\(\d+\)|op_sel\S*|neg_lo\S*|neg_hi\S*", "", operands)
        parts = [p.strip() for p in ops_clean.split(',')]
        if kind is None:
            if op.startswith('v_mfma'):
                kind = 'mfma'
            elif op.startswith('v_'):
                kind = 'valu'
            elif op.startswith('s_'):
                kind = 'salu'
            elif op.startswith('buffer_') or op.startswith('global_'):
                kind = 'vmem'
            elif op.startswith('ds_'):
                kind = 'lds'
            else:
                raise ValueError(txt)
        if kind == 'mfma':
            defs, uses = [], []
        if defs is None or uses is None:
            d, u = self._default_du(op, parts, kind, txt)
            defs = d if defs is None else defs
            uses = u if uses is None else uses
        need = 0
        p = self.pos

        def req(prev, n):
            nonlocal need
            gap = p - prev - 1
            if gap < n:
                need = max(need, n - gap)

        if kind == 'mfma':
            passes = 8 if '32x32' in op else 4
            c_regs = parse_regs(parts[3]) if len(parts) > 3 else []
            d_regs = parse_regs(parts[0])
            ab = parse_regs(parts[1]) + parse_regs(parts[2])
            for r in ab + c_regs:
                if r in self.valu_w:
                    req(self.valu_w[r], 2)
                if r in self.dot_w:
                    req(self.dot_w[r], 3)
            for r in ab:
                if r in self.mfma_w:
                    req(self.mfma_w[r][0], self.mfma_w[r][1])
            if c_regs and c_regs != d_regs:
                for r in c_regs:
                    if r in self.mfma_w:
                        req(self.mfma_w[r][0], self.mfma_w[r][1])
            self._need(need)
            self.lines.append("    " + txt)
            n_after = 12 if passes == 8 else 8
            for r in d_regs:
                self.mfma_w[r] = (self.pos, n_after)
                self.valu_w.pop(r, None)
            for r in c_regs:
                self.mfma_c[r] = (self.pos, 7 if passes == 8 else 3)
            self.pos += 1
            return
        is_dot = op.startswith('v_dot')
        for r in uses + defs:
            if r in self.dot_w:
                if is_dot and r in parse_regs(parts[-1]) and r not in parse_regs(parts[1]) + parse_regs(parts[2]):
                    continue
                req(self.dot_w[r], 3)
        for r in uses:
            if r in self.mfma_w:
                req(self.mfma_w[r][0], self.mfma_w[r][1])
        for r in defs:
            if r in self.mfma_w:
                req(self.mfma_w[r][0], self.mfma_w[r][1])
        if kind == 'valu':
            is_trans = op in TRANS
            for r in defs:
                if r in self.mfma_c:
                    req(self.mfma_c[r][0], self.mfma_c[r][1])
                if r in self.store_d:
                    req(self.store_d[r], 2)
            for r in uses:
                if r in self.trans_w and not is_trans:
                    req(self.trans_w[r], 1)
                if r in self.valu_sw:
                    req(self.valu_sw[r], 4 if op.startswith('v_readlane') or op.startswith('v_writelane') else 2)
            if op.startswith('v_readfirstlane') or op.startswith('v_readlane'):
                for r in uses:
                    if r in self.valu_w:
                        req(self.valu_w[r], 1)
            if 'dpp' in op or 'permlane' in op or 'quad_perm' in txt or 'row_' in txt:
                for r in uses:
                    if r in self.valu_w:
                        req(self.valu_w[r], 2)
        if kind == 'vmem' or kind == 'lds':
            for r in uses:
                if r in self.valu_sw:
                    req(self.valu_sw[r], 5)
            if ' lds' in txt:
                req(self.m0_w, 1)
            for r in defs:
                if r in self.store_d:
                    req(self.store_d[r], 1)
        if kind == 'salu':
            for r in uses:
                if r in self.valu_sw:
                    req(self.valu_sw[r], 2)
        self._need(need)
        self.lines.append("    " + txt)
        if kind == 'valu':
            for r in defs:
                if r[0] in ('v', 'a'):
                    self.valu_w[r] = self.pos
                    if is_dot:
                        self.dot_w[r] = self.pos
                    else:
                        self.dot_w.pop(r, None)
                    if op in TRANS:
                        self.trans_w[r] = self.pos
                    else:
                        self.trans_w.pop(r, None)
                    self.mfma_w.pop(r, None)
                else:
                    self.valu_sw[r] = self.pos
        elif kind == 'salu':
            for r in defs:
                self.valu_sw.pop(r, None)
                if r == ('m0', 0):
                    self.m0_w = self.pos
        elif kind in ('vmem', 'lds'):
            for r in defs:
                self.valu_w.pop(r, None)
                self.trans_w.pop(r, None)
                self.mfma_w.pop(r, None)
            if kind == 'vmem' and 'store' in op and ('x4' in op or 'x3' in op):
                for r in parse_regs(parts[0]):
                    self.store_d[r] = self.pos
            if kind == 'vmem':
                self.vm.append(tag)
            else:
                self.lg.append(tag)
        self.pos += 1

    def _default_du(self, op, parts, kind, txt):
        regs = [parse_regs(p) for p in parts]
        flat = lambda l: [x for y in l for x in y]
        if kind == 'valu':
            if op.startswith('v_cmp'):
                return regs[0], flat(regs[1:])
            if op.startswith('v_permlane'):
                return regs[0] + regs[1], regs[0] + regs[1]
            if op.startswith('v_fmac') or op.startswith('v_dot2c'):
                return regs[0], flat(regs)
            if op.startswith('v_cndmask') and len(parts) == 3:
                return regs[0], flat(regs[1:]) + [('vcc', 0)]
            if '_co_' in op:
                return regs[0] + regs[1], flat(regs[2:])
            return regs[0], flat(regs[1:])
        if kind == 'salu':
            if op.startswith('s_cmp') or op.startswith('s_cbranch') or op.startswith('s_branch') or op in (
                    's_barrier', 's_waitcnt', 's_nop', 's_sleep', 's_endpgm', 's_setprio'):
                return [], flat(regs)
            return regs[0], flat(regs[1:])
        if kind == 'vmem':
            if 'store' in op or ('atomic' in op):
                return [], flat(regs)
            if ' lds' in txt:
                return [], flat(regs)
            return regs[0], flat(regs[1:])
        if kind == 'lds':
            if 'write' in op:
                return [], flat(regs)
            return regs[0], flat(regs[1:])
        raise ValueError(txt)

    def wait_vm(self, tag=None, n=None):
        if n is None:
            idx = max(i for i, t in enumerate(self.vm) if t == tag) if tag in self.vm else None
            if idx is None:
                return
            n = len(self.vm) - 1 - idx
        n = min(n, 63)
        if n >= len(self.vm):
            return
        self.lines.append(f"    s_waitcnt vmcnt({n})")
        self.pos += 1
        self.vm = self.vm[len(self.vm) - n:] if n > 0 else []

    def wait_lg(self, tag=None, n=None):
        if n is None:
            idx = max(i for i, t in enumerate(self.lg) if t == tag) if tag in self.lg else None
            if idx is None:
                return
            n = len(self.lg) - 1 - idx
        assert n <= 15 or True
        n = min(n, 15)
        if n >= len(self.lg):
            return
        self.lines.append(f"    s_waitcnt lgkmcnt({n})")
        self.pos += 1
        self.lg = self.lg[len(self.lg) - n:] if n > 0 else []

    def wait_all(self):
        self.lines.append("    s_waitcnt vmcnt(0) lgkmcnt(0)")
        self.pos += 1
        self.vm = []
        self.lg = []

    def text(self):
        return "\n".join(self.lines) + "\n"
```

```python
import sys
from asmlib import *

NAME = "recurrent_scan__ssm_conv_s5__glu_gated_glu__prompt"
WS_HGLU = 0
WS_HS = 0x800000
WS_STATS = 0xC00000
WS_AGG = 0xC10000
WS_SIZE = 0x1000000

LOG2E = 0x3FB8AA3B
NLOG2E = 0xBFB8AA3B
INV2PI = 0x3E22F983

USE_DOT2_UNPACK = True
import os
DEBUG = int(os.environ.get('KDEBUG', '0'))


def srd(a, d, base, size):
    a.emit(f"s_mov_b32 s{d}, s{base}")
    a.emit(f"s_and_b32 s{d + 1}, s{base + 1}, 0xffff")
    a.emit(f"s_mov_b32 s{d + 2}, {size}")
    a.emit(f"s_mov_b32 s{d + 3}, 0x00020000")


P_X, P_LRE, P_LIM, P_BRE, P_BIM, P_CRE, P_CIM, P_LDT = 64, 66, 68, 70, 72, 74, 76, 78
P_DSK, P_BX, P_WG, P_WU, P_WD, P_OUT, P_DBG, P_WS = 80, 82, 84, 86, 88, 90, 92, 94


def load_kernargs(a):
    a.raw("s_load_dwordx16 s[64:79], s[0:1], 0")
    a.raw("s_load_dwordx16 s[80:95], s[0:1], 64")
    a.pos += 2


K1_STAGE = 36992
K1_UP_OFF = 14464
K1_SSM_OFF = 28800
K1_LDS = 4 * K1_STAGE


def gen_k1():
    a = Asm()
    e = a.emit
    XS, SA, SB, WSD, DBG, PLRE, PLIM, PLDT, AGG = 8, 12, 16, 20, 24, 28, 32, 36, 96
    sR, sC, sW = 40, 41, 42
    sOffA, sIncA, sOffB, sIncB = 43, 44, 45, 46
    sM0 = 48
    e(f"s_cmp_ge_u32 s2, {1 if DEBUG else 256}")
    e("s_cbranch_scc1 K1_END")
    load_kernargs(a)
    e("v_and_b32 v1, 63, v0")
    e("v_lshrrev_b32 v2, 6, v0")
    e(f"v_readfirstlane_b32 s{sW}, v2")
    e(f"s_lshr_b32 s{sR}, s2, 4")
    e(f"s_and_b32 s{sC}, s2, 15")
    a.raw("s_waitcnt lgkmcnt(0)")
    a.pos += 1
    srd(a, XS, P_X, 2097152)
    srd(a, WSD, P_WS, WS_SIZE)
    srd(a, DBG, P_DBG, 256)
    srd(a, PLRE, P_LRE, 1024)
    srd(a, PLIM, P_LIM, 1024)
    srd(a, PLDT, P_LDT, 1024)
    e("v_and_b32 v3, 31, v1")
    e("v_lshrrev_b32 v4, 5, v1")
    e(f"s_lshl_b32 s3, s{sR}, 7")
    e(f"s_lshl_b32 s4, s{sW}, 5")
    e("s_add_u32 s3, s3, s4")
    e("v_add_u32 v5, s3, v3")
    e("v_lshlrev_b32 v6, 10, v5")
    e("v_lshl_add_u32 v6, v4, 4, v6")
    for s in range(32):
        e(f"buffer_load_dwordx4 {vr(128 + 4 * s, 4)}, v6, {sr(XS, 4)}, 0 offen offset:{32 * s}", tag=('x', s))
    e(f"s_cmp_lt_u32 s{sW}, 2")
    e(f"s_cselect_b32 s{SA}, s{P_WG}, s{P_WU}")
    e(f"s_cselect_b32 s{SA + 1}, s{P_WG + 1}, s{P_WU + 1}")
    e(f"s_cselect_b32 s4, s{P_BRE}, s{P_BIM}")
    e(f"s_cselect_b32 s5, s{P_BRE + 1}, s{P_BIM + 1}")
    e(f"s_and_b32 s{SA + 1}, s{SA + 1}, 0xffff")
    e(f"s_mov_b32 s{SA + 2}, 1835008")
    e(f"s_mov_b32 s{SA + 3}, 0x00020000")
    e(f"s_and_b32 s5, s5, 0xffff")
    e(f"s_and_b32 s6, s{sW}, 1")
    e(f"s_cmp_eq_u32 s6, 1")
    e(f"s_cselect_b32 s{SB}, s4, s{SA}")
    e(f"s_cselect_b32 s{SB + 1}, s5, s{SA + 1}")
    e(f"s_cselect_b32 s{SB + 2}, 524288, s{SA + 2}")
    e(f"s_mov_b32 s{SB + 3}, 0x00020000")
    e(f"s_mov_b32 s{sIncA}, 229376")
    e(f"s_cselect_b32 s{sIncB}, 128, s{sIncA}")
    e(f"s_mov_b32 s{sOffA}, 0")
    e(f"s_mov_b32 s{sOffB}, 0")
    e(f"s_cselect_b32 s7, 9, 0")
    e(f"s_cmp_ge_u32 s{sW}, 2")
    e(f"s_cselect_b32 s58, {K1_UP_OFF}, 0")
    e(f"s_cselect_b32 s59, 4096, 0")
    e(f"s_add_u32 s59, s59, {K1_SSM_OFF}")
    e(f"s_mul_i32 s60, s{sC}, 224")
    e("s_movk_i32 s61, 4682")
    e("s_movk_i32 s62, 3584")
    for i in range(9):
        e(f"s_add_u32 s4, s7, {i}")
        e("s_lshl_b32 s5, s4, 6")
        e("v_add_u32 v7, s5, v1")
        e("v_mul_lo_u32 v8, v7, s61")
        e("v_lshrrev_b32 v8, 16, v8")
        e("v_mul_u32_u24 v9, 14, v8")
        e("v_sub_u32 v9, v7, v9")
        e("v_mul_lo_u32 v8, v8, s62")
        e("v_lshl_add_u32 v8, v9, 4, v8")
        e(f"v_add_u32 v{32 + i}, s60, v8")
        e("s_lshl_b32 s5, s4, 10")
        e(f"s_add_u32 s{sM0 + i}, s5, s58")
    e(f"s_cmp_eq_u32 s6, 1")
    e("s_cbranch_scc0 K1_NOSSMDMA")
    e("v_lshrrev_b32 v7, 3, v1")
    e("v_and_b32 v8, 7, v1")
    e(f"s_lshl_b32 s4, s{sC}, 5")
    for i in range(4):
        e(f"v_add_u32 v9, {8 * i}, v7")
        e("v_lshrrev_b32 v10, 1, v9")
        e("v_and_b32 v10, 7, v10")
        e("v_xor_b32 v10, v10, v8")
        e("v_add_u32 v9, s4, v9")
        e("v_lshlrev_b32 v9, 10, v9")
        e(f"v_lshl_add_u32 v{37 + i}, v10, 4, v9")
        e(f"s_add_u32 s{sM0 + 5 + i}, s59, {1024 * i}")
    a.label("K1_NOSSMDMA")
    a.nop(4)

    def dma_stage(S):
        slot = S % 4
        for i in range(9):
            e(f"s_add_u32 m0, s{sM0 + i}, {slot * K1_STAGE}")
            srdn, so = (SA, sOffA) if i < 5 else (SB, sOffB)
            e(f"buffer_load_dwordx4 v{32 + i}, {sr(srdn, 4)}, s{so} offen lds", tag=('st', S))
        e(f"s_add_u32 s{sOffA}, s{sOffA}, s{sIncA}")
        e(f"s_add_u32 s{sOffB}, s{sOffB}, s{sIncB}")

    dma_stage(0)
    dma_stage(1)
    dma_stage(2)
    e(f"s_lshl_b32 s4, s{sC}, 5")
    e("v_add_u32 v7, s4, v3")
    e("v_lshlrev_b32 v7, 1, v7")
    e(f"buffer_load_ushort v60, v7, {sr(PLRE, 4)}, 0 offen", tag='par')
    e(f"buffer_load_ushort v61, v7, {sr(PLIM, 4)}, 0 offen", tag='par')
    e(f"buffer_load_ushort v62, v7, {sr(PLDT, 4)}, 0 offen", tag='par')
    e("v_lshrrev_b32 v7, 4, v1")
    e("v_and_b32 v8, 1, v7")
    e("v_lshrrev_b32 v9, 1, v7")
    e("v_bfe_u32 v10, v1, 2, 2")
    e("v_lshl_add_u32 v10, v9, 3, v10")
    e("v_mul_u32_u24 v10, 224, v10")
    e(f"v_mul_u32_u24 v8, {K1_UP_OFF}, v8")
    e("v_add_u32 v10, v10, v8")
    e("v_and_b32 v11, 1, v1")
    e("v_bfe_u32 v12, v1, 1, 1")
    e("v_lshl_add_u32 v10, v11, 4, v10")
    e("v_lshl_add_u32 v41, v12, 3, v10")
    e(f"v_add_u32 v42, {2 * K1_STAGE}, v41")
    e("v_bfe_u32 v7, v3, 1, 3")
    e("v_lshlrev_b32 v8, 7, v3")
    for ks in range(4):
        e(f"v_add_u32 v9, {2 * ks}, v4")
        e("v_xor_b32 v9, v9, v7")
        e("v_lshl_add_u32 v9, v9, 4, v8")
        e(f"v_add_u32 v{43 + ks}, {K1_SSM_OFF}, v9")
        e(f"v_add_u32 v{47 + ks}, {K1_SSM_OFF + 2 * K1_STAGE}, v9")
    e("v_mov_b32 v53, 0x3f803f80")
    e("v_mov_b32 v54, 0x00003f80")
    e("v_mov_b32 v55, 0x3f800000")
    for i in range(8):
        e(f"v_mov_b32 v{16 + i}, 0")
    for s in range(32):
        a.wait_vm(tag=('x', s))
        for i in range(4):
            r = 128 + 4 * s + i
            e(f"v_dot2_f32_bf16 v{16 + (i & 3)}, v{r}, v53, v{16 + (i & 3)}")
            e(f"v_dot2_f32_bf16 v{20 + (i & 3)}, v{r}, v{r}, v{20 + (i & 3)}")
    dma_stage(3)
    e("v_add_f32 v16, v16, v17")
    e("v_add_f32 v18, v18, v19")
    e("v_add_f32 v20, v20, v21")
    e("v_add_f32 v22, v22, v23")
    e("v_add_f32 v16, v16, v18")
    e("v_add_f32 v20, v20, v22")
    e("v_mov_b32 v17, v16")
    e("v_mov_b32 v21, v20")
    e("v_permlane32_swap_b32 v16, v17")
    e("v_permlane32_swap_b32 v20, v21")
    e("v_add_f32 v16, v16, v17")
    e("v_add_f32 v20, v20, v21")
    e("v_mul_f32 v16, 0x3b000000, v16")
    e("v_mul_f32 v20, 0x3b000000, v20")
    e("v_fma_f32 v20, -v16, v16, v20")
    e("v_max_f32 v20, 0, v20")
    e("v_cvt_pk_bf16_f32 v17, v16, v20")
    e("v_lshlrev_b32 v18, 16, v17")
    e("v_and_b32 v19, 0xffff0000, v17")
    e("v_add_f32 v19, 0x3727c5ac, v19")
    e("v_cvt_pk_bf16_f32 v19, v19, v19")
    e("v_lshlrev_b32 v19, 16, v19")
    e("v_sqrt_f32 v19, v19")
    e("v_cvt_pk_bf16_f32 v19, v19, v19")
    e("v_lshlrev_b32 v19, 16, v19")
    e("v_rcp_f32 v52, v19")
    e("v_fma_f32 v20, -v19, v52, 1.0")
    e("v_fma_f32 v52, v20, v52, v52")
    e("v_sub_f32 v51, 0, v18")

    def norm_ops(s):
        st = [[], [], [], [], [], []]
        for i in range(4):
            r = 128 + 4 * s + i
            t0, t1 = 96 + 2 * i, 97 + 2 * i
            if USE_DOT2_UNPACK:
                st[0] += [f"v_dot2_f32_bf16 v{t0}, v{r}, v54, v51",
                          f"v_dot2_f32_bf16 v{t1}, v{r}, v55, v51"]
            else:
                st[0] += [f"v_lshlrev_b32 v{t0}, 16, v{r}",
                          f"v_and_b32 v{t1}, 0xffff0000, v{r}"]
                st[1] += [f"v_add_f32 v{t0}, v{t0}, v51",
                          f"v_add_f32 v{t1}, v{t1}, v51"]
            st[2] += [f"v_cvt_pk_bf16_f32 v{r}, v{t0}, v{t1}"]
            st[3] += [f"v_lshlrev_b32 v{t0}, 16, v{r}",
                      f"v_and_b32 v{t1}, 0xffff0000, v{r}"]
            st[4] += [f"v_mul_f32 v{t0}, v{t0}, v52",
                      f"v_mul_f32 v{t1}, v{t1}, v52"]
            st[5] += [f"v_cvt_pk_bf16_f32 v{r}, v{t0}, v{t1}"]
        return [x for l in st for x in l]

    for op in norm_ops(0):
        e(op)
    if DEBUG == 1:
        a.wait_vm(tag=('st', 0))
        e("s_barrier")
        e("v_lshlrev_b32 v7, 4, v0")
        for i in range(9):
            e(f"ds_read_b128 v[8:11], v7 offset:{4096 * i}", tag='d')
            a.wait_lg(n=0)
            e(f"v_add_u32 v12, {0xD00000 + 4096 * i}, v7")
            e(f"buffer_store_dwordx4 v[8:11], v12, {sr(WSD, 4)}, 0 offen", tag='d')
            a.wait_vm(n=0)
        e("ds_read_b64_tr_b16 v[8:9], v41 offset:0", tag='d')
        e(f"ds_read_b64_tr_b16 v[10:11], v41 offset:{4*224}", tag='d')
        a.wait_lg(n=0)
        e(f"v_add_u32 v12, {0xE00000}, v7")
        e(f"buffer_store_dwordx4 v[8:11], v12, {sr(WSD, 4)}, 0 offen", tag='d')
        e(f"v_add_u32 v12, {0xE10000}, v7")
        e(f"buffer_store_dwordx4 v[128:131], v12, {sr(WSD, 4)}, 0 offen", tag='d')
        a.wait_all()
        e("s_endpgm")

    NT = 9
    NF = 32 * NT
    D = 6
    RING = 8

    def frag_reg(n):
        return 64 + 4 * (n % RING)

    def issue_read(n):
        step, T = divmod(n, NT)
        S, ks = divmod(step, 4)
        slot = S % 4
        if T == 0 and ks == 0:
            a.wait_vm(tag=('st', S))
            e("s_barrier")
            if 2 <= S <= 5:
                dma_stage(S + 2)
        fr = frag_reg(n)
        hi = slot >= 2
        so = (slot & 1) * K1_STAGE
        if T < 7:
            base = 42 if hi else 41
            for h in range(2):
                off = so + (16 * ks + 4 * h) * 224 + 32 * T
                e(f"ds_read_b64_tr_b16 {vr(fr + 2 * h, 2)}, v{base} offset:{off}", tag=('f', n))
        else:
            base = (47 if hi else 43) + ks
            off = so + (T - 7) * 4096
            e(f"ds_read_b128 {vr(fr, 4)}, v{base} offset:{off}", tag=('f', n))

    for n in range(D):
        issue_read(n)
    pend = []
    for n in range(NF):
        step, T = divmod(n, NT)
        if T == 0:
            assert not pend
            pend = norm_ops(step + 1) if step + 1 < 32 else []
        a.wait_lg(tag=('f', n))
        c = "0" if step == 0 else ar(16 * T, 16)
        e(f"v_mfma_f32_32x32x16_bf16 {ar(16 * T, 16)}, {vr(frag_reg(n), 4)}, {vr(128 + 4 * step, 4)}, {c}")
        if n + D < NF:
            issue_read(n + D)
        k = (len(pend) + (NT - 1 - T)) // (NT - T) if pend else 0
        for _ in range(k):
            e(pend.pop(0))

    SC_PITCH = 272
    AGG_OFF = K1_STAGE
    e(f"s_lshl_b32 s3, s{sW}, 5")
    e("v_add_u32 v7, s3, v3")
    e(f"v_mul_u32_u24 v7, {SC_PITCH}, v7")
    e("v_lshl_add_u32 v7, v4, 4, v7")
    for part in range(2):
        for j in range(4):
            for i in range(4):
                e(f"v_accvgpr_read_b32 v{96 + 16 * part + 4 * j + i}, a{112 + 16 * part + 4 * j + i}")
    for part in range(2):
        for j in range(4):
            e(f"ds_write_b128 v7, {vr(96 + 16 * part + 4 * j, 4)} offset:{part * 128 + j * 32}", tag='w')
    a.wait_vm(tag='par')
    e("v_lshlrev_b32 v60, 16, v60")
    e("v_lshlrev_b32 v61, 16, v61")
    e("v_lshlrev_b32 v62, 16, v62")
    e(f"v_mul_f32 v62, {LOG2E:#x}, v62")
    e("v_exp_f32 v62, v62")
    e("v_cvt_pk_bf16_f32 v62, v62, v62")
    e("v_lshlrev_b32 v62, 16, v62")
    e("v_mul_f32 v8, v62, v60")
    e("v_mul_f32 v9, v62, v61")
    e(f"v_mul_f32 v8, {LOG2E:#x}, v8")
    e("v_exp_f32 v8, v8")
    e(f"v_mul_f32 v9, {INV2PI:#x}, v9")
    e("v_fract_f32 v9, v9")
    e("v_cos_f32 v10, v9")
    e("v_sin_f32 v11, v9")
    e("v_mul_f32 v10, v8, v10")
    e("v_mul_f32 v11, v8, v11")
    e("v_add_f32 v12, -1.0, v10")
    e("v_mul_f32 v13, v60, v60")
    e("v_fma_f32 v13, v61, v61, v13")
    e("v_rcp_f32 v14, v13")
    e("v_fma_f32 v15, -v13, v14, 1.0")
    e("v_fma_f32 v14, v15, v14, v14")
    e("v_add_f32 v14, v14, v14")
    e("v_mul_f32 v15, v12, v60")
    e("v_fma_f32 v15, v11, v61, v15")
    e("v_mul_f32 v16, v11, v60")
    e("v_fma_f32 v16, -v12, v61, v16")
    e("v_mul_f32 v12, v15, v14")
    e("v_mul_f32 v13, v16, v14")

    def csq(dr, di, sr_, si_):
        e(f"v_mul_f32 v18, v{si_}, v{si_}")
        e(f"v_mul_f32 v19, v{sr_}, v{si_}")
        e(f"v_fma_f32 v{dr}, v{sr_}, v{sr_}, -v18")
        e(f"v_add_f32 v{di}, v19, v19")

    csq(14, 15, 10, 11)
    for _ in range(3):
        csq(14, 15, 14, 15)
    csq(16, 17, 14, 15)
    csq(16, 17, 16, 17)
    csq(16, 17, 16, 17)
    e(f"s_lshl_b32 s3, s{sW}, 1")
    e("v_add_u32 v20, s3, v4")
    e(f"v_mul_u32_u24 v21, {16 * SC_PITCH}, v20")
    e("v_lshl_add_u32 v21, v3, 2, v21")
    a.wait_lg(n=0)
    e("s_barrier")
    for i in range(16):
        e(f"ds_read_b32 v{128 + i}, v21 offset:{i * SC_PITCH}", tag=('s', i))
        e(f"ds_read_b32 v{144 + i}, v21 offset:{i * SC_PITCH + 128}", tag=('s', i))
    for i in range(1, 16):
        a.wait_lg(tag=('s', i))
        r, im, pr, pi = 128 + i, 144 + i, 127 + i, 143 + i
        e(f"v_fma_f32 v{r}, v10, v{pr}, v{r}")
        e(f"v_fma_f32 v{im}, v10, v{pi}, v{im}")
        e(f"v_fma_f32 v{r}, -v11, v{pi}, v{r}")
        e(f"v_fma_f32 v{im}, v11, v{pr}, v{im}")
    e("v_lshlrev_b32 v22, 8, v20")
    e("v_lshl_add_u32 v22, v3, 3, v22")
    e("v_mov_b32 v24, v143")
    e("v_mov_b32 v25, v159")
    e(f"ds_write_b64 v22, v[24:25] offset:{AGG_OFF}", tag='w')
    e("v_lshlrev_b32 v22, 3, v3")
    a.wait_lg(n=0)
    e("s_barrier")
    for j in range(7):
        e(f"ds_read_b64 {vr(160 + 2 * j, 2)}, v22 offset:{AGG_OFF + 256 * j}", tag=('g', j))
    e("v_mov_b32 v24, 0")
    e("v_mov_b32 v25, 0")
    e("v_mov_b32 v26, 1.0")
    e("v_mov_b32 v27, 0")
    for j in range(7):
        a.wait_lg(tag=('g', j))
        gr, gi = 160 + 2 * j, 161 + 2 * j
        e(f"v_cmp_lt_u32 vcc, {j}, v20")
        e(f"v_fma_f32 v{gr}, v14, v24, v{gr}")
        e(f"v_fma_f32 v{gi}, v14, v25, v{gi}")
        e(f"v_fma_f32 v{gr}, -v15, v25, v{gr}")
        e(f"v_fma_f32 v{gi}, v15, v24, v{gi}")
        e("v_mul_f32 v28, v14, v26")
        e("v_mul_f32 v29, v14, v27")
        e("v_fma_f32 v28, -v15, v27, v28")
        e("v_fma_f32 v29, v15, v26, v29")
        e(f"v_cndmask_b32 v24, v24, v{gr}, vcc")
        e(f"v_cndmask_b32 v25, v25, v{gi}, vcc")
        e("v_cndmask_b32 v26, v26, v28, vcc")
        e("v_cndmask_b32 v27, v27, v29, vcc")
    e("v_fma_f32 v28, v14, v24, v143")
    e("v_fma_f32 v29, v14, v25, v159")
    e("v_fma_f32 v28, -v15, v25, v28")
    e("v_fma_f32 v29, v15, v24, v29")
    e(f"s_lshl_b32 s3, s{sC}, 12")
    e(f"s_add_u32 s3, s3, {WS_AGG}")
    e(f"s_add_u32 s{AGG}, s{P_WS}, s3")
    e(f"s_addc_u32 s{AGG + 1}, s{P_WS + 1}, 0")
    e(f"s_and_b32 s{AGG + 1}, s{AGG + 1}, 0xffff")
    e(f"s_mov_b32 s{AGG + 2}, 4096")
    e(f"s_mov_b32 s{AGG + 3}, 0x00020000")
    e(f"s_lshl_b32 s3, s{sR}, 8")
    e("v_lshl_add_u32 v30, v3, 3, s3")
    e(f"s_lshl_b32 s4, s{sC}, 2")
    e("v_mov_b32 v31, s4")
    e(f"s_lshl_b32 s5, 1, s{sR}")
    e("v_mov_b32 v23, s5")
    e(f"s_cmp_eq_u32 s{sW}, 3")
    e("s_cbranch_scc0 K1_NOPUB")
    e("s_mov_b32 exec_lo, 0", defs=[('exec', 0)], uses=[])
    e(f"buffer_store_dwordx2 v[28:29], v30, {sr(AGG, 4)}, 0 offen sc0 sc1", tag='pub')
    a.raw("s_waitcnt vmcnt(0)")
    a.pos += 1
    e("s_mov_b32 exec_hi, 1", defs=[('exec', 0)], uses=[])
    e(f"buffer_atomic_or v23, v31, {sr(DBG, 4)}, 0 offen sc1", tag='pub')
    e("s_mov_b64 exec, -1", defs=[('exec', 0)], uses=[])
    a.label("K1_NOPUB")
    a.nop(2)
    a.vm = ['x'] * 4
    e(f"s_cmp_eq_u32 s{sC}, 0")
    e("s_cbranch_scc0 K1_NOSTAT")
    e("v_lshlrev_b32 v2, 3, v5")
    e(f"v_add_u32 v2, {WS_STATS}, v2")
    e("v_sub_f32 v50, 0, v51")
    e("v_mov_b32 v51, v52")
    e(f"buffer_store_dwordx2 v[50:51], v2, {sr(WSD, 4)}, 0 offen", tag='st')
    a.label("K1_NOSTAT")
    a.nop(2)
    e("s_movk_i32 s62, 3584")
    e("v_mul_lo_u32 v2, v5, s62")
    e("v_lshl_add_u32 v2, v4, 4, v2")
    e("v_add_u32 v2, s60, v2")
    for T in range(7):
        g, u, o = 96, 104, 112 + 4 * (T & 1)
        for i in range(16):
            e(f"v_accvgpr_read_b32 v{96 + i}, a{16 * T + i}")
        for p in range(4):
            e(f"v_cvt_pk_bf16_f32 v{120 + p}, v{g + 2 * p}, v{g + 2 * p + 1}")
            e(f"v_cvt_pk_bf16_f32 v{124 + p}, v{u + 2 * p}, v{u + 2 * p + 1}")
        for p in range(4):
            e(f"v_lshlrev_b32 v{g + 2 * p}, 16, v{120 + p}")
            e(f"v_and_b32 v{g + 2 * p + 1}, 0xffff0000, v{120 + p}")
            e(f"v_lshlrev_b32 v{u + 2 * p}, 16, v{124 + p}")
            e(f"v_and_b32 v{u + 2 * p + 1}, 0xffff0000, v{124 + p}")
        for i in range(8):
            e(f"v_mul_f32 v{g + i}, {NLOG2E:#x}, v{g + i}")
        for i in range(8):
            e(f"v_exp_f32 v{g + i}, v{g + i}")
        for i in range(8):
            e(f"v_add_f32 v{g + i}, 1.0, v{g + i}")
        for i in range(8):
            e(f"v_rcp_f32 v{g + i}, v{g + i}")
        for p in range(4):
            e(f"v_cvt_pk_bf16_f32 v{120 + p}, v{g + 2 * p}, v{g + 2 * p + 1}")
        for p in range(4):
            e(f"v_lshlrev_b32 v{g + 2 * p}, 16, v{120 + p}")
            e(f"v_and_b32 v{g + 2 * p + 1}, 0xffff0000, v{120 + p}")
        for i in range(8):
            e(f"v_mul_f32 v{g + i}, v{g + i}, v{u + i}")
        for p in range(4):
            e(f"v_cvt_pk_bf16_f32 v{o + p}, v{g + 2 * p}, v{g + 2 * p + 1}")
        e(f"buffer_store_dwordx4 {vr(o, 4)}, v2, {sr(WSD, 4)}, 0 offen offset:{32 * T}", tag='hg')
    e(f"s_lshl_b32 s5, 1, s{sR}")
    e("s_sub_u32 s5, s5, 1")
    a.label("K1_POLL")
    a.nop(2)
    e(f"buffer_load_dword v23, v31, {sr(DBG, 4)}, 0 offen sc0 sc1", tag='poll')
    a.raw("s_waitcnt vmcnt(0)")
    a.pos += 1
    a.vm = []
    e("v_readfirstlane_b32 s6, v23")
    e("s_and_b32 s6, s6, s5")
    e("s_cmp_eq_u32 s6, s5")
    e("s_cbranch_scc1 K1_POLLDONE")
    e("s_sleep 2")
    e("s_branch K1_POLL")
    a.label("K1_POLLDONE")
    a.nop(2)
    e("v_lshlrev_b32 v30, 3, v3")
    for i in range(15):
        e(f"buffer_load_dwordx2 {vr(160 + 2 * i, 2)}, v30, {sr(AGG, 4)}, 0 offen offset:{256 * i} sc0 sc1", tag=('c', i))
    e("v_mov_b32 v28, 0")
    e("v_mov_b32 v29, 0")
    for i in range(15):
        e(f"s_cmp_le_u32 s{sR}, {i}")
        e("s_cbranch_scc1 K1_CARRYDONE")
        a.wait_vm(tag=('c', i))
        gr, gi = 160 + 2 * i, 161 + 2 * i
        e(f"v_fma_f32 v{gr}, v16, v28, v{gr}")
        e(f"v_fma_f32 v{gi}, v16, v29, v{gi}")
        e(f"v_fma_f32 v{gr}, -v17, v29, v{gr}")
        e(f"v_fma_f32 v{gi}, v17, v28, v{gi}")
        e(f"v_mov_b32 v28, v{gr}")
        e(f"v_mov_b32 v29, v{gi}")
    a.label("K1_CARRYDONE")
    a.raw("s_waitcnt vmcnt(0)")
    a.pos += 1
    a.vm = []
    a.nop(2)
    e("v_fma_f32 v24, v26, v28, v24")
    e("v_fma_f32 v25, v26, v29, v25")
    e("v_fma_f32 v24, -v27, v29, v24")
    e("v_fma_f32 v25, v27, v28, v25")
    e(f"s_lshl_b32 s3, s{sR}, 18")
    e(f"s_lshl_b32 s4, s{sC}, 7")
    e("s_add_u32 s3, s3, s4")
    e(f"s_add_u32 s3, s3, {WS_HS}")
    e("v_lshlrev_b32 v30, 15, v20")
    e("v_add_u32 v30, s3, v30")
    e("v_and_b32 v31, 1, v3")
    e("v_lshl_add_u32 v30, v31, 6, v30")
    e("v_and_b32 v23, 30, v3")
    e("v_lshl_add_u32 v30, v23, 1, v30")
    e("v_cmp_eq_u32 vcc, 1, v31")
    for i in range(16):
        r, im = 128 + i, 144 + i
        e("v_mul_f32 v26, v10, v24")
        e("v_mul_f32 v27, v10, v25")
        e("v_fma_f32 v26, -v11, v25, v26")
        e("v_fma_f32 v25, v11, v24, v27")
        e("v_mov_b32 v24, v26")
        e(f"v_add_f32 v{r}, v{r}, v24")
        e(f"v_add_f32 v{im}, v{im}, v25")
        e(f"v_mul_f32 v26, v12, v{r}")
        e(f"v_mul_f32 v27, v12, v{im}")
        e(f"v_fma_f32 v26, -v13, v{im}, v26")
        e(f"v_fma_f32 v27, -v13, v{r}, -v27")
        e("v_cndmask_b32 v28, v27, v26, vcc")
        e("v_mov_b32_dpp v29, v28 quad_perm:[1,0,3,2] row_mask:0xf bank_mask:0xf")
        e("v_cndmask_b32 v28, v26, v29, vcc")
        e("v_cndmask_b32 v29, v29, v27, vcc")
        e(f"v_cvt_pk_bf16_f32 v{r}, v28, v29")
        e(f"s_movk_i32 s6, {2048 * i}")
        e(f"buffer_store_dword v{r}, v30, {sr(WSD, 4)}, s6 offen", tag='hs')
    a.label("K1_END")
    e("s_endpgm")
    return a


K2_LDS = 131072


def gen_k2():
    a = Asm()
    e = a.emit
    CRE, CIM, WSD, WD, XS, DSK, OUT = 8, 12, 16, 20, 24, 28, 32
    sRB, sCB, sW = 40, 41, 42
    e(f"s_cmp_ge_u32 s2, {0 if DEBUG else 256}")
    e("s_cbranch_scc1 K2_END")
    load_kernargs(a)
    e("v_and_b32 v1, 63, v0")
    e("v_lshrrev_b32 v2, 6, v0")
    e(f"v_readfirstlane_b32 s{sW}, v2")
    e("s_and_b32 s3, s2, 7")
    e("s_lshr_b32 s4, s2, 3")
    e(f"s_and_b32 s{sCB}, s4, 7")
    e("s_lshr_b32 s4, s4, 3")
    e("s_lshl_b32 s3, s3, 2")
    e(f"s_add_u32 s{sRB}, s3, s4")
    a.raw("s_waitcnt lgkmcnt(0)")
    a.pos += 1
    srd(a, CRE, P_CRE, 524288)
    srd(a, CIM, P_CIM, 524288)
    srd(a, WSD, P_WS, WS_SIZE)
    srd(a, WD, P_WD, 1835008)
    srd(a, XS, P_X, 2097152)
    srd(a, DSK, P_DSK, 1024)
    srd(a, OUT, P_OUT, 4194304)
    e("v_and_b32 v3, 15, v1")
    e("v_lshrrev_b32 v4, 4, v1")
    e(f"s_lshl_b32 s3, s{sCB}, 6")
    e("v_add_u32 v5, s3, v3")
    e("v_lshlrev_b32 v5, 10, v5")
    e("v_lshl_add_u32 v5, v4, 4, v5")
    e(f"s_lshl_b32 s4, s{sW}, 8")
    e("v_add_u32 v5, s4, v5")
    e(f"s_lshl_b32 s3, s{sRB}, 6")
    e("v_add_u32 v8, s3, v3")
    e("v_lshlrev_b32 v6, 11, v8")
    e("v_lshl_add_u32 v6, v4, 4, v6")
    e(f"s_lshl_b32 s4, s{sW}, 9")
    e(f"s_add_u32 s4, s4, {WS_HS}")
    e("v_add_u32 v6, s4, v6")
    e("s_movk_i32 s5, 3584")
    e("v_mul_lo_u32 v7, v8, s5")
    e("v_lshl_add_u32 v7, v4, 4, v7")
    e(f"s_mul_i32 s4, s{sW}, 896")
    e("v_add_u32 v7, s4, v7")
    sMT = 44
    sNH = 48
    sNG = 52
    for t in range(4):
        e(f"s_mov_b32 s{sMT + t}, {t * 16384}")
        e(f"s_mov_b32 s{sNH + t}, {t * 32768}")
        e(f"s_mov_b32 s{sNG + t}, {t * 57344}")
    e("v_lshrrev_b32 v9, 3, v1")
    e("v_bfe_u32 v10, v1, 1, 2")
    e("v_and_b32 v11, 1, v1")
    e("v_bfe_u32 v12, v1, 4, 1")
    e("v_lshlrev_b32 v9, 10, v9")
    e(f"s_lshl_b32 s3, s{sCB}, 7")
    e("v_add_u32 v9, s3, v9")
    e("v_lshl_add_u32 v9, v11, 4, v9")
    e("v_xor_b32 v13, v10, v12")
    e("v_lshl_add_u32 v14, v13, 5, v9")
    e("v_xor_b32 v13, 2, v13")
    e("v_lshl_add_u32 v15, v13, 5, v9")
    e(f"s_mul_i32 s56, s{sW}, {448 * 1024}")
    e(f"s_lshl_b32 s57, s{sW}, 15")
    e("v_bfe_u32 v9, v1, 2, 2")
    e("v_lshl_add_u32 v10, v4, 3, v9")
    e("v_lshlrev_b32 v10, 7, v10")
    e("v_and_b32 v11, 3, v1")
    e("v_lshl_add_u32 v10, v11, 3, v10")
    e("v_add_u32 v10, s57, v10")
    e("v_lshrrev_b32 v11, 1, v9")
    e("v_and_b32 v12, 1, v4")
    e("v_lshl_add_u32 v11, v12, 1, v11")
    for mt in range(4):
        e(f"v_xor_b32 v12, {mt}, v11")
        e(f"v_lshl_add_u32 v{16 + mt}, v12, 5, v10")

    ACCY, ACCD = 128, 192
    FR = 32
    NBUF = 3

    def dma(S):
        slot = S % 4
        for i in range(8):
            e(f"s_add_u32 m0, s57, {slot * 8192 + i * 1024}")
            e(f"s_add_u32 s58, s56, {(64 * S + 8 * i) * 1024}")
            e(f"buffer_load_dwordx4 v{14 + (i & 1)}, {sr(WD, 4)}, s58 offen lds", tag=('d', S))

    NSTEP = 22

    def issue_loads(n):
        fb = FR + 32 * (n % NBUF)
        if n < 8:
            b, part = divmod(n, 2)
            srdc = CRE if part == 0 else CIM
            for t in range(4):
                e(f"buffer_load_dwordx4 {vr(fb + 4 * t, 4)}, v5, {sr(srdc, 4)}, s{sMT + t} offen offset:{64 * b}", tag=('l', n))
            for t in range(4):
                e(f"buffer_load_dwordx4 {vr(fb + 16 + 4 * t, 4)}, v6, {sr(WSD, 4)}, s{sNH + t} offen offset:{128 * b + 64 * part}", tag=('l', n))
        else:
            j = n - 8
            for t in range(4):
                e(f"buffer_load_dwordx4 {vr(fb + 16 + 4 * t, 4)}, v7, {sr(WSD, 4)}, s{sNG + t} offen offset:{64 * j}", tag=('l', n))

    def issue_tr(n):
        fb = FR + 32 * (n % NBUF)
        j = n - 8
        S, half = divmod(j, 2)
        slot = S % 4
        a.wait_vm(tag=('d', S))
        for mt in range(4):
            for h in range(2):
                off = slot * 8192 + (32 * half + 4 * h) * 128
                e(f"ds_read_b64_tr_b16 {vr(fb + 4 * mt + 2 * h, 2)}, v{16 + mt} offset:{off}", tag=('t', n))

    issue_loads(0)
    issue_loads(1)
    dma(0)
    dma(1)
    for n in range(NSTEP):
        if n + 2 < NSTEP:
            issue_loads(n + 2)
        if n == 1:
            dma(2)
        if n == 3:
            dma(3)
        if n + 1 >= 8 and n + 1 < NSTEP:
            issue_tr(n + 1)
        a.wait_vm(tag=('l', n))
        if n >= 8:
            a.wait_lg(tag=('t', n))
        fb = FR + 32 * (n % NBUF)
        acc = ACCY if n < 8 else ACCD
        first = n == 0 or n == 8
        for nt in range(4):
            for mt in range(4):
                d = acc + 16 * nt + 4 * mt
                c = "0" if first else vr(d, 4)
                e(f"v_mfma_f32_16x16x32_bf16 {vr(d, 4)}, {vr(fb + 4 * mt, 4)}, {vr(fb + 16 + 4 * nt, 4)}, {c}")
        if n >= 8 and (n - 8) % 2 == 1:
            S = (n - 8) // 2
            if S + 4 < 7:
                dma(S + 4)
    e("s_barrier")
    e("v_lshlrev_b32 v9, 4, v1")
    e(f"s_lshl_b32 s3, s{sW}, 13")
    e("v_add_u32 v9, s3, v9")
    e("v_add_u32 v10, 0x10000, v9")
    for nt in range(4):
        for k in range(8):
            src = (ACCY if k < 4 else ACCD) + 16 * nt + 4 * (k & 3)
            e(f"ds_write_b128 v{9 + (nt >> 1)}, {vr(src, 4)} offset:{(nt & 1) * 32768 + k * 1024}", tag='w')
    e(f"s_lshl_b32 s3, s{sW}, 4")
    e("v_add_u32 v8, s3, v8")
    e(f"s_lshl_b32 s4, s{sCB}, 6")
    e("v_lshl_add_u32 v10, v4, 2, s4")
    e("v_lshlrev_b32 v11, 10, v8")
    e("v_lshl_add_u32 v11, v10, 1, v11")
    e("v_lshlrev_b32 v12, 1, v10")
    e("v_lshlrev_b32 v13, 3, v8")
    e(f"v_add_u32 v13, {WS_STATS}, v13")
    for mt in range(4):
        e(f"buffer_load_dwordx2 {vr(32 + 2 * mt, 2)}, v11, {sr(XS, 4)}, 0 offen offset:{32 * mt}", tag='e')
        e(f"buffer_load_dwordx2 {vr(40 + 2 * mt, 2)}, v12, {sr(DSK, 4)}, 0 offen offset:{32 * mt}", tag='e')
    e(f"buffer_load_dwordx2 v[48:49], v13, {sr(WSD, 4)}, 0 offen", tag='e')
    e("v_lshlrev_b32 v9, 4, v1")
    e(f"s_lshl_b32 s3, s{sW}, 15")
    e("v_add_u32 v9, s3, v9")
    a.wait_lg(n=0)
    e("s_barrier")
    for s in range(4):
        for k in range(8):
            e(f"ds_read_b128 {vr(128 + 32 * s + 4 * k, 4)}, v9 offset:{s * 8192 + k * 1024}", tag=('r', s, k))
    for k in range(8):
        a.wait_lg(tag=('r', 1, k))
        for i in range(4):
            e(f"v_add_f32 v{128 + 4 * k + i}, v{128 + 4 * k + i}, v{160 + 4 * k + i}")
    for k in range(8):
        a.wait_lg(tag=('r', 3, k))
        for i in range(4):
            e(f"v_add_f32 v{192 + 4 * k + i}, v{192 + 4 * k + i}, v{224 + 4 * k + i}")
    for k in range(8):
        for i in range(4):
            e(f"v_add_f32 v{128 + 4 * k + i}, v{128 + 4 * k + i}, v{192 + 4 * k + i}")
    a.wait_vm(tag='e')
    e("v_lshlrev_b32 v11, 1, v11")
    for mt in range(4):
        for p in range(2):
            xr = 32 + 2 * mt + p
            dr = 40 + 2 * mt + p
            y0, y1 = 128 + 4 * mt + 2 * p, 129 + 4 * mt + 2 * p
            d0, d1 = 144 + 4 * mt + 2 * p, 145 + 4 * mt + 2 * p
            e(f"v_lshlrev_b32 v50, 16, v{xr}")
            e(f"v_and_b32 v51, 0xffff0000, v{xr}")
            e("v_sub_f32 v52, v50, v48")
            e("v_sub_f32 v53, v51, v48")
            e("v_cvt_pk_bf16_f32 v54, v52, v53")
            e("v_lshlrev_b32 v52, 16, v54")
            e("v_and_b32 v53, 0xffff0000, v54")
            e("v_mul_f32 v52, v52, v49")
            e("v_mul_f32 v53, v53, v49")
            e("v_cvt_pk_bf16_f32 v54, v52, v53")
            e("v_lshlrev_b32 v52, 16, v54")
            e("v_and_b32 v53, 0xffff0000, v54")
            e(f"v_lshlrev_b32 v55, 16, v{dr}")
            e(f"v_and_b32 v56, 0xffff0000, v{dr}")
            e("v_mul_f32 v52, v52, v55")
            e("v_mul_f32 v53, v53, v56")
            e("v_cvt_pk_bf16_f32 v54, v52, v53")
            e("v_lshlrev_b32 v52, 16, v54")
            e("v_and_b32 v53, 0xffff0000, v54")
            e(f"v_add_f32 v{y0}, v{y0}, v52")
            e(f"v_add_f32 v{y1}, v{y1}, v53")
            e(f"v_cvt_pk_bf16_f32 v54, v{d0}, v{d1}")
            e("v_lshlrev_b32 v52, 16, v54")
            e("v_and_b32 v53, 0xffff0000, v54")
            e(f"v_mul_f32 v55, {NLOG2E:#x}, v52")
            e(f"v_mul_f32 v56, {NLOG2E:#x}, v53")
            e("v_exp_f32 v55, v55")
            e("v_exp_f32 v56, v56")
            e("v_add_f32 v55, 1.0, v55")
            e("v_add_f32 v56, 1.0, v56")
            e("v_rcp_f32 v55, v55")
            e("v_rcp_f32 v56, v56")
            e("v_mul_f32 v55, v52, v55")
            e("v_mul_f32 v56, v53, v56")
            e("v_cvt_pk_bf16_f32 v54, v55, v56")
            e("v_lshlrev_b32 v52, 16, v54")
            e("v_and_b32 v53, 0xffff0000, v54")
            e(f"v_mul_f32 v{y0}, v{y0}, v52")
            e(f"v_mul_f32 v{y1}, v{y1}, v53")
            e(f"v_add_f32 v{y0}, v50, v{y0}")
            e(f"v_add_f32 v{y1}, v51, v{y1}")
        e(f"buffer_store_dwordx4 {vr(128 + 4 * mt, 4)}, v11, {sr(OUT, 4)}, 0 offen offset:{64 * mt}", tag='o')
    a.label("K2_END")
    e("s_endpgm")
    return a


def kd(name, nfv, acc):
    return f""".p2align 6
.amdhsa_kernel {name}
  .amdhsa_next_free_vgpr {nfv}
  .amdhsa_next_free_sgpr 102
  .amdhsa_accum_offset {acc}
  .amdhsa_group_segment_fixed_size 0
  .amdhsa_kernarg_size 128
  .amdhsa_user_sgpr_count 2
  .amdhsa_user_sgpr_kernarg_segment_ptr 1
  .amdhsa_system_sgpr_workgroup_id_x 1
  .amdhsa_float_denorm_mode_32 3
  .amdhsa_float_denorm_mode_16_64 3
.end_amdhsa_kernel
"""


def main():
    k1 = gen_k1()
    k2 = gen_k2()
    out = []
    out.append(f"; @launch kernel=ssm_k1_kernel grid=(256,1,1) block=(256,1,1) lds={K1_LDS}")
    out.append(f"; @launch kernel=ssm_k2_kernel grid=(256,1,1) block=(256,1,1) lds={K2_LDS}")
    out.append('.amdgcn_target "amdgcn-amd-amdhsa--gfx950"')
    out.append(".text")
    for nm, k in (("ssm_k1_kernel", k1), ("ssm_k2_kernel", k2)):
        out.append(f".globl {nm}")
        out.append(".p2align 8")
        out.append(f".type {nm},@function")
        out.append(f"{nm}:")
        out.append(k.text())
    out.append('.section .rodata,"a"')
    out.append(kd("ssm_k1_kernel", 400, 256))
    out.append(kd("ssm_k2_kernel", 256, 256))
    txt = "\n".join(out)
    path = sys.argv[1] if len(sys.argv) > 1 else f"cdna_kernels/{NAME}.s"
    open(path, "w").write(txt)
    print("k1 lines", len(k1.lines), "nops", k1.nops, "k2 lines", len(k2.lines), "nops", k2.nops)


if __name__ == "__main__":
    main()
```

```python
import sys, os
from asmlib import *

NAME = "recurrent_scan__ssm_conv_s5__glu_gated_glu__prompt"
WS_XF = 0x000000
WS_W1 = 0x200000
WS_W2 = 0x700000
WS_AF = 0xA00000
WS_STATS = 0x1500000
WS_AGG = 0x1510000
WS_STAMP = 0x1600000
WS_SIZE = 0x2000000

LOG2E = 0x3FB8AA3B
NLOG2E = 0xBFB8AA3B
INV2PI = 0x3E22F983

STAMP = int(os.environ.get('KSTAMP', '0'))

P_X, P_LRE, P_LIM, P_BRE, P_BIM, P_CRE, P_CIM, P_LDT = 64, 66, 68, 70, 72, 74, 76, 78
P_DSK, P_BX, P_WG, P_WU, P_WD, P_OUT, P_DBG, P_WS = 80, 82, 84, 86, 88, 90, 92, 94


class Stamper:
    def __init__(self, a, vreg, name):
        self.a = a; self.v = vreg; self.n = 0; self.name = name

    def stamp(self, name):
        if not STAMP:
            return
        a = self.a
        a.raw("s_memtime s[100:101]")
        a.raw("s_waitcnt lgkmcnt(0)")
        a.pos += 2
        a.lg = []
        a.emit(f"v_writelane_b32 v{self.v}, s100, {self.n}", defs=[('v', self.v)], uses=[])
        print("stamp", self.name, self.n, name)
        self.n += 1

    def dump(self, wsd, base, tmp, shift=10):
        if not STAMP:
            return
        a = self.a
        a.emit(f"v_lshlrev_b32 v{tmp}, 2, v0")
        a.emit(f"s_lshl_b32 s100, s2, {shift}")
        a.emit(f"s_add_u32 s100, s100, {base}")
        a.emit(f"v_add_u32 v{tmp}, s100, v{tmp}")
        a.emit(f"buffer_store_dword v{self.v}, v{tmp}, {sr(wsd, 4)}, 0 offen", tag='stamp')


def srd(a, d, base, size):
    a.emit(f"s_mov_b32 s{d}, s{base}")
    a.emit(f"s_and_b32 s{d + 1}, s{base + 1}, 0xffff")
    a.emit(f"s_mov_b32 s{d + 2}, {size}")
    a.emit(f"s_mov_b32 s{d + 3}, 0x00020000")


def srd_off(a, d, base, soff, size):
    a.emit(f"s_add_u32 s{d}, s{base}, s{soff}")
    a.emit(f"s_addc_u32 s{d + 1}, s{base + 1}, 0")
    a.emit(f"s_and_b32 s{d + 1}, s{d + 1}, 0xffff")
    a.emit(f"s_mov_b32 s{d + 2}, {size}")
    a.emit(f"s_mov_b32 s{d + 3}, 0x00020000")


def load_kernargs(a):
    a.raw("s_load_dwordx16 s[64:79], s[0:1], 0")
    a.raw("s_load_dwordx16 s[80:95], s[0:1], 64")
    a.pos += 2


def lgk0(a):
    a.raw("s_waitcnt lgkmcnt(0)")
    a.pos += 1
    a.lg = []


def vm0(a):
    a.raw("s_waitcnt vmcnt(0)")
    a.pos += 1
    a.vm = []


K0_LDS = 32768
K0_GRID = 376


def gen_k0():
    a = Asm()
    e = a.emit
    WSD, SA, SB = 8, 12, 16
    sW = 42
    e(f"s_cmp_ge_u32 s2, {K0_GRID}")
    e("s_cbranch_scc1 K0_END")
    load_kernargs(a)
    e("v_and_b32 v1, 63, v0")
    e("v_lshrrev_b32 v2, 6, v0")
    e(f"v_readfirstlane_b32 s{sW}, v2")
    lgk0(a)
    srd(a, WSD, P_WS, WS_SIZE)
    e("s_cmp_ge_u32 s2, 128")
    e("s_cbranch_scc1 K0_NOTLN")
    srd(a, SA, P_X, 2097152)
    e("s_lshl_b32 s3, s2, 4")
    e(f"s_lshl_b32 s4, s{sW}, 2")
    e("s_add_u32 s3, s3, s4")
    e("s_lshl_b32 s4, s3, 10")
    e("v_lshlrev_b32 v3, 4, v1")
    e("v_add_u32 v3, s4, v3")
    for i in range(4):
        e(f"buffer_load_dwordx4 {vr(16 + 4 * i, 4)}, v3, {sr(SA, 4)}, 0 offen offset:{1024 * i}", tag=('x', i))
    e("v_mov_b32 v4, 0x3f803f80")
    e("v_mov_b32 v5, 0x00003f80")
    e("v_mov_b32 v6, 0x3f800000")
    e("s_lshr_b32 s5, s3, 5")
    e("s_lshl_b32 s5, s5, 15")
    e("s_and_b32 s6, s3, 31")
    e("s_lshl_b32 s6, s6, 4")
    e("s_add_u32 s5, s5, s6")
    e("v_lshrrev_b32 v7, 1, v1")
    e("v_lshlrev_b32 v7, 10, v7")
    e("v_and_b32 v8, 1, v1")
    e("v_lshl_add_u32 v7, v8, 9, v7")
    e("v_add_u32 v7, s5, v7")
    if WS_XF:
        e(f"v_add_u32 v7, {WS_XF}, v7")
    for i in range(4):
        a.wait_vm(tag=('x', i))
        e(f"v_dot2_f32_bf16 v{32 + 2 * i}, v{16 + 4 * i}, v4, 0")
        e(f"v_dot2_f32_bf16 v{33 + 2 * i}, v{16 + 4 * i}, v{16 + 4 * i}, 0")
        for j in range(1, 4):
            e(f"v_dot2_f32_bf16 v{32 + 2 * i}, v{16 + 4 * i + j}, v4, v{32 + 2 * i}")
            e(f"v_dot2_f32_bf16 v{33 + 2 * i}, v{16 + 4 * i + j}, v{16 + 4 * i + j}, v{33 + 2 * i}")
    for pat in ("quad_perm:[1,0,3,2]", "quad_perm:[2,3,0,1]", "row_half_mirror", "row_mirror"):
        for k in range(8):
            e(f"v_add_f32_dpp v{32 + k}, v{32 + k}, v{32 + k} {pat} row_mask:0xf bank_mask:0xf")
    for sw in ("v_permlane16_swap_b32", "v_permlane32_swap_b32"):
        for k in range(8):
            e(f"v_mov_b32 v{40 + k}, v{32 + k}")
        for k in range(8):
            e(f"{sw} v{32 + k}, v{40 + k}")
        for k in range(8):
            e(f"v_add_f32 v{32 + k}, v{32 + k}, v{40 + k}")
    for i in range(4):
        sm, sq = 32 + 2 * i, 33 + 2 * i
        e(f"v_mul_f32 v{sm}, 0x3b000000, v{sm}")
        e(f"v_mul_f32 v{sq}, 0x3b000000, v{sq}")
        e(f"v_fma_f32 v{sq}, -v{sm}, v{sm}, v{sq}")
        e(f"v_max_f32 v{sq}, 0, v{sq}")
        e(f"v_cvt_pk_bf16_f32 v{sm}, v{sm}, v{sq}")
        e(f"v_lshlrev_b32 v{56 + 2 * i}, 16, v{sm}")
        e(f"v_and_b32 v{sq}, 0xffff0000, v{sm}")
        e(f"v_add_f32 v{sq}, 0x3727c5ac, v{sq}")
        e(f"v_cvt_pk_bf16_f32 v{sq}, v{sq}, v{sq}")
        e(f"v_lshlrev_b32 v{sq}, 16, v{sq}")
        e(f"v_sqrt_f32 v{sq}, v{sq}")
        e(f"v_cvt_pk_bf16_f32 v{sq}, v{sq}, v{sq}")
        e(f"v_lshlrev_b32 v{sq}, 16, v{sq}")
        e(f"v_rcp_f32 v{52 + i}, v{sq}")
        e(f"v_fma_f32 v{sm}, -v{sq}, v{52 + i}, 1.0")
        e(f"v_fma_f32 v{52 + i}, v{sm}, v{52 + i}, v{52 + i}")
        e(f"v_sub_f32 v{48 + i}, 0, v{56 + 2 * i}")
        e(f"v_mov_b32 v{57 + 2 * i}, v{52 + i}")
    for i in range(4):
        for j in range(4):
            r = 16 + 4 * i + j
            e(f"v_dot2_f32_bf16 v{64 + 2 * j}, v{r}, v5, v{48 + i}")
            e(f"v_dot2_f32_bf16 v{65 + 2 * j}, v{r}, v6, v{48 + i}")
        for j in range(4):
            r = 16 + 4 * i + j
            e(f"v_cvt_pk_bf16_f32 v{r}, v{64 + 2 * j}, v{65 + 2 * j}")
        for j in range(4):
            r = 16 + 4 * i + j
            e(f"v_lshlrev_b32 v{64 + 2 * j}, 16, v{r}")
            e(f"v_and_b32 v{65 + 2 * j}, 0xffff0000, v{r}")
        for j in range(4):
            e(f"v_mul_f32 v{64 + 2 * j}, v{64 + 2 * j}, v{52 + i}")
            e(f"v_mul_f32 v{65 + 2 * j}, v{65 + 2 * j}, v{52 + i}")
        for j in range(4):
            r = 16 + 4 * i + j
            e(f"v_cvt_pk_bf16_f32 v{r}, v{64 + 2 * j}, v{65 + 2 * j}")
        e(f"buffer_store_dwordx4 {vr(16 + 4 * i, 4)}, v7, {sr(WSD, 4)}, 0 offen offset:{16 * i}", tag='o')
    e("s_lshl_b32 s4, s3, 3")
    e(f"s_add_u32 s4, s4, {WS_STATS}")
    e("v_mov_b32 v8, s4")
    e("s_mov_b64 exec, 1", defs=[('exec', 0)], uses=[])
    e(f"buffer_store_dwordx4 v[56:59], v8, {sr(WSD, 4)}, 0 offen", tag='o')
    e(f"buffer_store_dwordx4 v[60:63], v8, {sr(WSD, 4)}, 0 offen offset:16", tag='o')
    e("s_endpgm")
    a.label("K0_NOTLN")
    a.nop(2)
    e("s_cmp_ge_u32 s2, 256")
    e("s_cbranch_scc1 K0_NOTGLU")
    UPOFF = 14336
    e("s_sub_u32 s3, s2, 128")
    e("s_lshr_b32 s4, s3, 2")
    e("s_and_b32 s5, s3, 3")
    e(f"s_cmp_lt_u32 s{sW}, 2")
    e(f"s_cselect_b32 s{SA}, s{P_WG}, s{P_WU}")
    e(f"s_cselect_b32 s{SA + 1}, s{P_WG + 1}, s{P_WU + 1}")
    e(f"s_cselect_b32 s7, 0, {UPOFF}")
    e(f"s_and_b32 s{SA + 1}, s{SA + 1}, 0xffff")
    e(f"s_mov_b32 s{SA + 2}, 1835008")
    e(f"s_mov_b32 s{SA + 3}, 0x00020000")
    e(f"s_and_b32 s6, s{sW}, 1")
    e("s_mul_i32 s6, s6, 7")
    e("s_mul_i32 s20, s4, 57344")
    e("s_mul_i32 s21, s5, 896")
    e("s_add_u32 s20, s20, s21")
    e("s_movk_i32 s22, 1171")
    e("s_movk_i32 s23, 3584")
    for i in range(7):
        e(f"s_add_u32 s24, s6, {i}")
        e("s_lshl_b32 s25, s24, 6")
        e("v_add_u32 v3, s25, v1")
        e("v_mul_lo_u32 v4, v3, s22")
        e("v_lshrrev_b32 v4, 16, v4")
        e("v_mul_u32_u24 v5, 56, v4")
        e("v_sub_u32 v5, v3, v5")
        e("v_mul_lo_u32 v4, v4, s23")
        e("v_lshl_add_u32 v4, v5, 4, v4")
        e("s_lshl_b32 s25, s24, 10")
        e("s_add_u32 m0, s25, s7")
        e(f"buffer_load_dwordx4 v4, {sr(SA, 4)}, s20 offen lds", tag='d')
    e("v_lshrrev_b32 v7, 4, v1")
    e("v_and_b32 v8, 1, v7")
    e("v_lshrrev_b32 v9, 1, v7")
    e("v_bfe_u32 v10, v1, 2, 2")
    e("v_lshl_add_u32 v10, v9, 3, v10")
    e("v_mul_u32_u24 v10, 896, v10")
    e(f"v_mul_u32_u24 v8, {UPOFF}, v8")
    e("v_add_u32 v10, v10, v8")
    e("v_and_b32 v11, 1, v1")
    e("v_bfe_u32 v12, v1, 1, 1")
    e("v_lshl_add_u32 v10, v11, 4, v10")
    e("v_lshl_add_u32 v10, v12, 3, v10")
    e(f"s_mul_i32 s24, s{sW}, 224")
    e("v_add_u32 v10, s24, v10")
    e("s_lshl_b32 s24, s5, 2")
    e(f"s_add_u32 s24, s24, s{sW}")
    e("s_mul_i32 s24, s24, 294912")
    e("s_lshl_b32 s25, s4, 10")
    e("s_add_u32 s24, s24, s25")
    e(f"s_add_u32 s24, s24, {WS_W1}")
    e("v_lshlrev_b32 v11, 4, v1")
    e("v_add_u32 v11, s24, v11")
    vm0(a)
    e("s_barrier")
    for T in range(7):
        for h in range(2):
            e(f"ds_read_b64_tr_b16 {vr(16 + 4 * T + 2 * h, 2)}, v10 offset:{4 * h * 896 + 32 * T}", tag=('t', T))
    for T in range(7):
        a.wait_lg(tag=('t', T))
        e(f"s_mov_b32 s25, {32768 * T}")
        e(f"buffer_store_dwordx4 {vr(16 + 4 * T, 4)}, v11, {sr(WSD, 4)}, s25 offen", tag='o')
    e("s_endpgm")
    a.label("K0_NOTGLU")
    a.nop(2)
    e("s_cmp_ge_u32 s2, 288")
    e("s_cbranch_scc1 K0_NOTSSM")
    e("s_sub_u32 s3, s2, 256")
    e("s_lshl_b32 s3, s3, 2")
    e(f"s_add_u32 s3, s3, s{sW}")
    e("s_lshr_b32 s4, s3, 3")
    e("s_bfe_u32 s5, s3, 0x10002")
    e("s_and_b32 s6, s3, 3")
    e("s_cmp_eq_u32 s5, 0")
    e(f"s_cselect_b32 s{SA}, s{P_BRE}, s{P_BIM}")
    e(f"s_cselect_b32 s{SA + 1}, s{P_BRE + 1}, s{P_BIM + 1}")
    e(f"s_and_b32 s{SA + 1}, s{SA + 1}, 0xffff")
    e(f"s_mov_b32 s{SA + 2}, 524288")
    e(f"s_mov_b32 s{SA + 3}, 0x00020000")
    e("v_and_b32 v3, 31, v1")
    e("v_lshrrev_b32 v4, 5, v1")
    e("s_lshl_b32 s7, s4, 5")
    e("v_add_u32 v3, s7, v3")
    e("v_lshlrev_b32 v3, 10, v3")
    e("v_lshl_add_u32 v3, v4, 4, v3")
    e("s_lshl_b32 s7, s6, 8")
    e("v_add_u32 v3, s7, v3")
    for i in range(8):
        e(f"buffer_load_dwordx4 {vr(16 + 4 * i, 4)}, v3, {sr(SA, 4)}, 0 offen offset:{32 * i}", tag=('x', i))
    e("s_mul_i32 s7, s4, 9")
    e("s_add_u32 s7, s7, s5")
    e("s_add_u32 s7, s7, 7")
    e("s_lshl_b32 s7, s7, 15")
    e("s_lshl_b32 s20, s6, 13")
    e("s_add_u32 s7, s7, s20")
    e(f"s_add_u32 s7, s7, {WS_W1}")
    e("v_lshlrev_b32 v11, 4, v1")
    e("v_add_u32 v11, s7, v11")
    for i in range(8):
        a.wait_vm(tag=('x', i))
        e(f"s_movk_i32 s25, {1024 * i}")
        e(f"buffer_store_dwordx4 {vr(16 + 4 * i, 4)}, v11, {sr(WSD, 4)}, s25 offen", tag='o')
    e("s_endpgm")
    a.label("K0_NOTSSM")
    a.nop(2)
    e("s_cmp_ge_u32 s2, 320")
    e("s_cbranch_scc1 K0_NOTC")
    e("s_sub_u32 s3, s2, 288")
    e("s_lshl_b32 s3, s3, 2")
    e(f"s_add_u32 s3, s3, s{sW}")
    e("s_lshr_b32 s4, s3, 4")
    e("s_and_b32 s5, s3, 15")
    srd(a, SA, P_CRE, 524288)
    srd(a, SB, P_CIM, 524288)
    e("v_and_b32 v3, 15, v1")
    e("v_lshrrev_b32 v4, 4, v1")
    e("s_lshl_b32 s7, s4, 6")
    e("v_add_u32 v3, s7, v3")
    e("v_lshlrev_b32 v3, 10, v3")
    e("v_lshl_add_u32 v3, v4, 4, v3")
    e("s_lshl_b32 s7, s5, 6")
    e("v_add_u32 v3, s7, v3")
    for i in range(8):
        e(f"s_mov_b32 s25, {16384 * (i & 3)}")
        e(f"buffer_load_dwordx4 {vr(16 + 4 * i, 4)}, v3, {sr(SA if i < 4 else SB, 4)}, s25 offen", tag=('x', i))
    e("s_mul_i32 s7, s4, 88")
    e("s_lshl_b32 s20, s5, 1")
    e("s_add_u32 s7, s7, s20")
    e("s_lshl_b32 s7, s7, 12")
    e(f"s_add_u32 s7, s7, {WS_W2}")
    e("v_lshlrev_b32 v11, 4, v1")
    e("v_add_u32 v11, s7, v11")
    for i in range(8):
        a.wait_vm(tag=('x', i))
        e(f"s_movk_i32 s25, {1024 * i}")
        e(f"buffer_store_dwordx4 {vr(16 + 4 * i, 4)}, v11, {sr(WSD, 4)}, s25 offen", tag='o')
    e("s_endpgm")
    a.label("K0_NOTC")
    a.nop(2)
    e("s_sub_u32 s3, s2, 320")
    srd(a, SA, P_WD, 1835008)
    e("s_lshl_b32 s4, s3, 15")
    e(f"s_lshl_b32 s5, s{sW}, 13")
    e("s_add_u32 s4, s4, s5")
    e("v_lshlrev_b32 v3, 4, v1")
    for i in range(8):
        e(f"s_add_u32 m0, s5, {1024 * i}")
        e(f"s_add_u32 s6, s4, {1024 * i}")
        e(f"buffer_load_dwordx4 v3, {sr(SA, 4)}, s6 offen lds", tag='d')
    e("v_lshrrev_b32 v4, 4, v1")
    e("v_bfe_u32 v5, v1, 2, 2")
    e("v_lshl_add_u32 v5, v4, 3, v5")
    e("v_lshlrev_b32 v5, 10, v5")
    e("v_and_b32 v6, 3, v1")
    e("v_lshl_add_u32 v5, v6, 3, v5")
    e(f"s_lshl_b32 s6, s{sW}, 8")
    e("v_add_u32 v5, s6, v5")
    e(f"s_mul_i32 s7, s{sW}, 176")
    e("s_add_u32 s7, s7, s3")
    e("s_add_u32 s7, s7, 32")
    e("s_lshl_b32 s7, s7, 12")
    e(f"s_add_u32 s7, s7, {WS_W2}")
    e("v_add_u32 v11, s7, v3")
    vm0(a)
    e("s_barrier")
    for i in range(8):
        cbo, mt = divmod(i, 4)
        for h in range(2):
            e(f"ds_read_b64_tr_b16 {vr(16 + 4 * i + 2 * h, 2)}, v5 offset:{4096 * h + 128 * cbo + 32 * mt}", tag=('t', i))
    for i in range(8):
        cbo, mt = divmod(i, 4)
        a.wait_lg(tag=('t', i))
        e(f"s_mov_b32 s25, {cbo * 88 * 4096 + mt * 1024}")
        e(f"buffer_store_dwordx4 {vr(16 + 4 * i, 4)}, v11, {sr(WSD, 4)}, s25 offen", tag='o')
    a.label("K0_END")
    e("s_endpgm")
    return a


K1_SCAN = 98304
SC_PITCH = 272
K1_AGGL = K1_SCAN + 128 * SC_PITCH
K1_LDS = K1_AGGL + 2048


def gen_k1_full():
    a = Asm()
    e = a.emit
    WSD, DBG, PLRE, PLIM, PLDT, AGG = 8, 12, 16, 20, 24, 28
    sR, sC, sW = 40, 41, 42
    TORD = [7, 8, 0, 1, 2, 3, 4, 5, 6]
    e("s_cmp_ge_u32 s2, 256")
    e("s_cbranch_scc1 K1_END")
    load_kernargs(a)
    e("v_and_b32 v1, 63, v0")
    e("v_lshrrev_b32 v2, 6, v0")
    e(f"v_readfirstlane_b32 s{sW}, v2")
    e("s_lshr_b32 s3, s2, 3")
    e("s_bfe_u32 s4, s2, 0x20001")
    e("s_lshl_b32 s4, s4, 2")
    e("s_and_b32 s5, s3, 3")
    e(f"s_add_u32 s{sR}, s4, s5")
    e("s_and_b32 s4, s2, 1")
    e("s_lshl_b32 s4, s4, 3")
    e("s_lshr_b32 s5, s3, 2")
    e(f"s_add_u32 s{sC}, s4, s5")
    e("v_lshlrev_b32 v6, 4, v1")
    e("v_and_b32 v3, 31, v1")
    e("v_lshrrev_b32 v4, 5, v1")
    lgk0(a)
    st = Stamper(a, 95, "k1")
    st.stamp("start")
    srd(a, WSD, P_WS, WS_SIZE)
    e(f"s_cmp_ge_u32 s{sW}, 4")
    e("s_cbranch_scc1 K1_COMPUTE")
    e(f"s_mul_i32 s43, s{sC}, 294912")
    e(f"s_lshl_b32 s44, s{sW}, 13")
    e("s_add_u32 s43, s43, s44")
    e(f"s_add_u32 s43, s43, {WS_W1}")

    def dma_tile(idx):
        T = TORD[idx]
        slot = idx % 3
        for i in range(8):
            e(f"s_add_u32 m0, s44, {slot * 32768 + i * 1024}")
            e(f"s_add_u32 s45, s43, {T * 32768 + i * 1024}")
            e(f"buffer_load_dwordx4 v6, {sr(WSD, 4)}, s45 offen lds", tag=('w', idx))

    dma_tile(0)
    dma_tile(1)
    srd(a, DBG, P_DBG, 256)
    srd(a, PLRE, P_LRE, 1024)
    srd(a, PLIM, P_LIM, 1024)
    srd(a, PLDT, P_LDT, 1024)
    e(f"s_lshl_b32 s4, s{sC}, 5")
    e("v_add_u32 v7, s4, v3")
    e("v_lshlrev_b32 v7, 1, v7")
    e(f"buffer_load_ushort v24, v7, {sr(PLRE, 4)}, 0 offen", tag='par')
    e(f"buffer_load_ushort v25, v7, {sr(PLIM, 4)}, 0 offen", tag='par')
    e(f"buffer_load_ushort v26, v7, {sr(PLDT, 4)}, 0 offen", tag='par')
    e(f"s_lshl_b32 s3, s{sC}, 12")
    e(f"s_add_u32 s3, s3, {WS_AGG}")
    srd_off(a, AGG, P_WS, 3, 4096)
    RAW = 32
    GA = 64

    def bar(idx):
        a.wait_vm(tag=('w', idx))
        a.wait_lg(n=0)
        e("s_barrier")
        if idx + 2 < 9:
            dma_tile(idx + 2)

    bar(0)
    a.wait_vm(tag='par')
    for t in ("v_lshlrev_b32 v24, 16, v24", "v_lshlrev_b32 v25, 16, v25", "v_lshlrev_b32 v26, 16, v26",
              f"v_mul_f32 v26, {LOG2E:#x}, v26", "v_exp_f32 v26, v26", "v_cvt_pk_bf16_f32 v26, v26, v26",
              "v_lshlrev_b32 v26, 16, v26", "v_mul_f32 v8, v26, v24", "v_mul_f32 v9, v26, v25",
              f"v_mul_f32 v8, {LOG2E:#x}, v8", "v_exp_f32 v8, v8", f"v_mul_f32 v9, {INV2PI:#x}, v9",
              "v_fract_f32 v9, v9", "v_cos_f32 v10, v9", "v_sin_f32 v11, v9",
              "v_mul_f32 v10, v8, v10", "v_mul_f32 v11, v8, v11",
              "v_add_f32 v12, -1.0, v10", "v_mul_f32 v13, v24, v24", "v_fma_f32 v13, v25, v25, v13",
              "v_rcp_f32 v14, v13", "v_fma_f32 v15, -v13, v14, 1.0", "v_fma_f32 v14, v15, v14, v14",
              "v_add_f32 v14, v14, v14", "v_mul_f32 v15, v12, v24", "v_fma_f32 v15, v11, v25, v15",
              "v_mul_f32 v16, v11, v24", "v_fma_f32 v16, -v12, v25, v16",
              "v_mul_f32 v12, v15, v14", "v_mul_f32 v13, v16, v14"):
        e(t)

    def csq(dr, di, sr_, si_):
        for t in (f"v_mul_f32 v18, v{si_}, v{si_}", f"v_mul_f32 v19, v{sr_}, v{si_}",
                  f"v_fma_f32 v{dr}, v{sr_}, v{sr_}, -v18", f"v_add_f32 v{di}, v19, v19"):
            e(t)
    csq(14, 15, 10, 11)
    for _ in range(3):
        csq(14, 15, 14, 15)
    csq(16, 17, 14, 15)
    csq(16, 17, 16, 17)
    csq(16, 17, 16, 17)
    for t in (f"s_lshl_b32 s3, s{sW}, 1", "v_add_u32 v20, s3, v4",
              f"v_mul_u32_u24 v21, {16 * SC_PITCH}, v20", "v_lshl_add_u32 v21, v3, 2, v21",
              f"v_add_u32 v21, {K1_SCAN}, v21",
              "v_lshlrev_b32 v22, 8, v20", "v_lshl_add_u32 v22, v3, 3, v22", f"v_add_u32 v22, {K1_AGGL}, v22",
              "v_lshlrev_b32 v23, 3, v3", f"v_add_u32 v23, {K1_AGGL}, v23"):
        e(t)
    bar(1)
    bar(2)
    bar(3)
    for i in range(16):
        e(f"ds_read_b32 v{RAW + i}, v21 offset:{i * SC_PITCH}", tag=('s', i))
        e(f"ds_read_b32 v{RAW + 16 + i}, v21 offset:{i * SC_PITCH + 128}", tag=('s', i))
    for i in range(1, 16):
        r, im, pr, pi = RAW + i, RAW + 16 + i, RAW + i - 1, RAW + 15 + i
        a.wait_lg(tag=('s', i))
        e(f"v_fma_f32 v{r}, v10, v{pr}, v{r}")
        e(f"v_fma_f32 v{im}, v10, v{pi}, v{im}")
        e(f"v_fma_f32 v{r}, -v11, v{pi}, v{r}")
        e(f"v_fma_f32 v{im}, v11, v{pr}, v{im}")
    e(f"v_mov_b32 v28, v{RAW + 15}")
    e(f"v_mov_b32 v29, v{RAW + 31}")
    e("ds_write_b64 v22, v[28:29]", tag='w')
    bar(4)
    for j in range(7):
        e(f"ds_read_b64 {vr(GA + 2 * j, 2)}, v23 offset:{256 * j}", tag=('g', j))
    for t in ("v_mov_b32 v24, 0", "v_mov_b32 v25, 0", "v_mov_b32 v26, 1.0", "v_mov_b32 v27, 0"):
        e(t)
    for j in range(7):
        gr, gi = GA + 2 * j, GA + 1 + 2 * j
        a.wait_lg(tag=('g', j))
        e(f"v_cmp_lt_u32 vcc, {j}, v20")
        for t in (f"v_fma_f32 v{gr}, v14, v24, v{gr}", f"v_fma_f32 v{gi}, v14, v25, v{gi}",
                  f"v_fma_f32 v{gr}, -v15, v25, v{gr}", f"v_fma_f32 v{gi}, v15, v24, v{gi}",
                  "v_mul_f32 v28, v14, v26", "v_mul_f32 v29, v14, v27",
                  "v_fma_f32 v28, -v15, v27, v28", "v_fma_f32 v29, v15, v26, v29",
                  f"v_cndmask_b32 v24, v24, v{gr}, vcc", f"v_cndmask_b32 v25, v25, v{gi}, vcc",
                  "v_cndmask_b32 v26, v26, v28, vcc", "v_cndmask_b32 v27, v27, v29, vcc"):
            e(t)
    for t in (f"v_fma_f32 v28, v14, v24, v{RAW + 15}", f"v_fma_f32 v29, v14, v25, v{RAW + 31}",
              "v_fma_f32 v28, -v15, v25, v28", "v_fma_f32 v29, v15, v24, v29",
              f"s_lshl_b32 s3, s{sR}, 8", "v_lshl_add_u32 v30, v3, 3, s3",
              f"s_lshl_b32 s4, s{sC}, 2", "v_mov_b32 v31, s4",
              f"s_lshl_b32 s5, 1, s{sR}", "v_mov_b32 v7, s5"):
        e(t)
    e(f"s_cmp_eq_u32 s{sW}, 3")
    e("s_cbranch_scc0 K1_NOPUB")
    e("s_mov_b32 exec_lo, 0", defs=[('exec', 0)], uses=[])
    e(f"buffer_store_dwordx2 v[28:29], v30, {sr(AGG, 4)}, 0 offen sc0 sc1", tag='pub')
    a.raw("s_waitcnt vmcnt(0)")
    a.pos += 1
    e("s_mov_b32 exec_hi, 1", defs=[('exec', 0)], uses=[])
    e(f"buffer_atomic_or v7, v31, {sr(DBG, 4)}, 0 offen sc1", tag='pub')
    e("s_mov_b64 exec, -1", defs=[('exec', 0)], uses=[])
    a.label("K1_NOPUB")
    a.nop(2)
    a.vm = [t for t in a.vm if t != 'pub'] + ['pub']
    bar(5)
    bar(6)
    bar(7)
    bar(8)
    st.stamp("L bar8")
    e(f"s_lshl_b32 s5, 1, s{sR}")
    e("s_sub_u32 s5, s5, 1")
    a.label("K1_POLL")
    a.nop(2)
    e(f"buffer_load_dword v7, v31, {sr(DBG, 4)}, 0 offen sc0 sc1", tag='poll')
    vm0(a)
    e("v_readfirstlane_b32 s6, v7")
    e("s_and_b32 s6, s6, s5")
    e("s_cmp_eq_u32 s6, s5")
    e("s_cbranch_scc1 K1_POLLDONE")
    e("s_sleep 1")
    e("s_branch K1_POLL")
    a.label("K1_POLLDONE")
    a.nop(2)
    st.stamp("L polled")
    e("v_lshlrev_b32 v30, 3, v3")
    for i in range(15):
        e(f"buffer_load_dwordx2 {vr(GA + 2 * i, 2)}, v30, {sr(AGG, 4)}, 0 offen offset:{256 * i} sc0 sc1", tag=('c', i))
    for t in (f"s_lshl_b32 s3, s{sR}, 1", "s_mul_i32 s3, s3, 88", f"s_lshl_b32 s4, s{sC}, 1", "s_add_u32 s3, s3, s4",
              "s_lshl_b32 s3, s3, 12", f"s_add_u32 s3, s3, {WS_AF}",
              "v_lshrrev_b32 v2, 2, v20", "v_mul_u32_u24 v2, 88, v2", "v_and_b32 v31, 1, v3",
              "v_add_u32 v2, v2, v31", "v_lshlrev_b32 v2, 12, v2", "v_add_u32 v2, s3, v2",
              "v_and_b32 v7, 3, v20", "v_lshl_add_u32 v2, v7, 10, v2",
              "v_lshrrev_b32 v7, 3, v3", "v_lshl_add_u32 v2, v7, 8, v2",
              "v_and_b32 v7, 6, v3", "v_lshl_add_u32 v2, v7, 1, v2",
              "v_cmp_eq_u32 vcc, 1, v31", "v_mov_b32 v28, 0", "v_mov_b32 v29, 0"):
        e(t)
    vm0(a)
    for i in range(15):
        e(f"s_cmp_le_u32 s{sR}, {i}")
        e("s_cbranch_scc1 K1_CARRYDONE")
        gr, gi = GA + 2 * i, GA + 1 + 2 * i
        e(f"v_fma_f32 v{gr}, v16, v28, v{gr}")
        e(f"v_fma_f32 v{gi}, v16, v29, v{gi}")
        e(f"v_fma_f32 v{gr}, -v17, v29, v{gr}")
        e(f"v_fma_f32 v{gi}, v17, v28, v{gi}")
        e(f"v_mov_b32 v28, v{gr}")
        e(f"v_mov_b32 v29, v{gi}")
    a.label("K1_CARRYDONE")
    a.nop(2)
    for t in ("v_fma_f32 v24, v26, v28, v24", "v_fma_f32 v25, v26, v29, v25",
              "v_fma_f32 v24, -v27, v29, v24", "v_fma_f32 v25, v27, v28, v25"):
        e(t)
    for i in range(16):
        r, im = RAW + i, RAW + 16 + i
        for t in ("v_mul_f32 v26, v10, v24", "v_mul_f32 v27, v10, v25",
                  "v_fma_f32 v26, -v11, v25, v26", "v_fma_f32 v25, v11, v24, v27", "v_mov_b32 v24, v26",
                  f"v_add_f32 v{r}, v{r}, v24", f"v_add_f32 v{im}, v{im}, v25",
                  f"v_mul_f32 v26, v12, v{r}", f"v_mul_f32 v27, v12, v{im}",
                  f"v_fma_f32 v26, -v13, v{im}, v26", f"v_fma_f32 v27, -v13, v{r}, -v27",
                  "v_cndmask_b32 v28, v27, v26, vcc",
                  "v_mov_b32_dpp v29, v28 quad_perm:[1,0,3,2] row_mask:0xf bank_mask:0xf",
                  "v_cndmask_b32 v28, v26, v29, vcc", "v_cndmask_b32 v29, v29, v27, vcc",
                  f"v_cvt_pk_bf16_f32 v{r}, v28, v29"):
            e(t)
        e(f"buffer_store_dword v{r}, v2, {sr(WSD, 4)}, 0 offen offset:{16 * i}", tag='hs')
    st.stamp("L end")
    st.dump(WSD, WS_STAMP, 2, shift=11)
    e("s_endpgm")

    a.label("K1_COMPUTE")
    a.nop(4)
    a.vm = []
    a.lg = []
    st.n = 1
    e(f"s_sub_u32 s{sW}, s{sW}, 4")
    e(f"s_lshl_b32 s3, s{sR}, 2")
    e(f"s_add_u32 s3, s3, s{sW}")
    e("s_lshl_b32 s3, s3, 15")
    if WS_XF:
        e(f"s_add_u32 s3, s3, {WS_XF}")
    for s in range(32):
        if s % 4 == 0:
            e(f"s_add_u32 s4, s3, {1024 * s}")
        e(f"buffer_load_dwordx4 {ar(32 + 4 * s, 4)}, v6, {sr(WSD, 4)}, s4 offen offset:{1024 * (s % 4)}", tag=('x', s))
    e(f"v_add_u32 v5, 0x10000, v6")
    for t in (f"s_lshl_b32 s3, s{sW}, 5", "v_add_u32 v7, s3, v3", f"v_mul_u32_u24 v7, {SC_PITCH}, v7",
              "v_lshl_add_u32 v7, v4, 4, v7", f"v_add_u32 v7, {K1_SCAN}, v7",
              f"s_lshl_b32 s3, s{sR}, 1", f"s_lshr_b32 s4, s{sW}, 1", "s_add_u32 s3, s3, s4",
              "s_mul_i32 s3, s3, 88", "s_add_u32 s3, s3, 32", "s_lshl_b32 s3, s3, 12",
              f"s_and_b32 s4, s{sW}, 1", "s_lshl_b32 s4, s4, 11", "s_add_u32 s3, s3, s4",
              f"s_add_u32 s3, s3, {WS_AF}",
              "v_lshrrev_b32 v2, 4, v3", "v_lshlrev_b32 v2, 10, v2", "v_and_b32 v8, 15, v3",
              "v_lshl_add_u32 v2, v8, 4, v2", "v_add_u32 v2, s3, v2",
              f"s_mul_i32 s46, s{sC}, 14", "v_add_u32 v8, s46, v4"):
        e(t)
    ACC = [32, 48]
    D = int(os.environ.get('K1D', '5'))
    RING = 8

    def ops_dump(acc, part):
        return [(lambda j=j: e(f"ds_write_b128 v7, {vr(acc + 4 * j, 4)} offset:{part * 128 + j * 32}", tag='w')) for j in range(4)]

    def ops_glu(acc, T):
        g, u = acc, acc + 8
        o = 64 + 4 * (T & 1)
        t0 = 72
        L = []
        w = L.append
        for p in range(4):
            w(lambda p=p: e(f"v_cvt_pk_bf16_f32 v{t0 + p}, v{g + 2 * p}, v{g + 2 * p + 1}"))
            w(lambda p=p: e(f"v_cvt_pk_bf16_f32 v{t0 + 4 + p}, v{u + 2 * p}, v{u + 2 * p + 1}"))
        for p in range(4):
            w(lambda p=p: e(f"v_lshlrev_b32 v{g + 2 * p}, 16, v{t0 + p}"))
            w(lambda p=p: e(f"v_and_b32 v{g + 2 * p + 1}, 0xffff0000, v{t0 + p}"))
        for i in range(8):
            w(lambda i=i: e(f"v_mul_f32 v{g + i}, {NLOG2E:#x}, v{g + i}"))
        for i in range(8):
            w(lambda i=i: e(f"v_exp_f32 v{g + i}, v{g + i}"))
            p = i // 2
            if i % 2 == 0:
                w(lambda p=p: e(f"v_lshlrev_b32 v{u + 2 * p}, 16, v{t0 + 4 + p}"))
            else:
                w(lambda p=p: e(f"v_and_b32 v{u + 2 * p + 1}, 0xffff0000, v{t0 + 4 + p}"))
        for i in range(8):
            w(lambda i=i: e(f"v_add_f32 v{g + i}, 1.0, v{g + i}"))
        for i in range(8):
            w(lambda i=i: e(f"v_rcp_f32 v{g + i}, v{g + i}"))
        w(lambda: e(f"v_add_u32 v80, {2 * T}, v8"))
        w(lambda: e("v_lshrrev_b32 v81, 2, v80"))
        w(lambda: e("v_and_b32 v80, 3, v80"))
        w(lambda: e("v_lshl_add_u32 v81, v81, 12, v2"))
        w(lambda: e(f"v_lshl_add_u32 v{82 + (T & 1)}, v80, 8, v81"))
        for p in range(4):
            w(lambda p=p: e(f"v_cvt_pk_bf16_f32 v{t0 + p}, v{g + 2 * p}, v{g + 2 * p + 1}"))
        for p in range(4):
            w(lambda p=p: e(f"v_lshlrev_b32 v{g + 2 * p}, 16, v{t0 + p}"))
            w(lambda p=p: e(f"v_and_b32 v{g + 2 * p + 1}, 0xffff0000, v{t0 + p}"))
        for i in range(8):
            w(lambda i=i: e(f"v_mul_f32 v{g + i}, v{g + i}, v{u + i}"))
        for p in range(4):
            w(lambda p=p: e(f"v_cvt_pk_bf16_f32 v{o + p}, v{g + 2 * p}, v{g + 2 * p + 1}"))
        w(lambda: e(f"buffer_store_dwordx4 {vr(o, 4)}, v{82 + (T & 1)}, {sr(WSD, 4)}, 0 offen", tag='hg'))
        return L

    def frag(n):
        return ar(4 * (n % RING), 4)

    NF = 9 * 32

    def issue_read(n):
        idx, s = divmod(n, 32)
        slot = idx % 3
        if s == 0:
            e("s_barrier")
            st.stamp(f"barrier {idx}")
        base = 5 if slot == 2 else 6
        off = (slot & 1) * 32768 + s * 1024 if slot < 2 else s * 1024
        e(f"ds_read_b128 {frag(n)}, v{base} offset:{off}", tag=('f', n))

    for n in range(D):
        issue_read(n)
    pend = []
    for n in range(NF):
        idx, s = divmod(n, 32)
        acc = ACC[idx & 1]
        if s == 0:
            assert not pend
            if idx >= 1:
                pacc = ACC[(idx - 1) & 1]
                pT = TORD[idx - 1]
                pend = ops_dump(pacc, pT - 7) if pT >= 7 else ops_glu(pacc, pT)
        if idx == 0:
            a.wait_vm(tag=('x', s))
        a.wait_lg(tag=('f', n))
        c = "0" if s == 0 else vr(acc, 16)
        e(f"v_mfma_f32_32x32x16_bf16 {vr(acc, 16)}, {frag(n)}, {ar(32 + 4 * s, 4)}, {c}")
        if s >= 2:
            rem = max(1, (32 - D) - s)
            k = (len(pend) + rem - 1) // rem if pend else 0
            for _ in range(k):
                if pend:
                    pend.pop(0)()
        if n + D < NF:
            if (n + D) % 32 == 0:
                assert not pend
                a.wait_lg(tag='w')
            issue_read(n + D)
    st.stamp("main end")
    for op in ops_glu(ACC[8 & 1], TORD[8]):
        op()
    st.stamp("end")
    st.dump(WSD, WS_STAMP, 2, shift=11)
    a.label("K1_END")
    e("s_endpgm")
    return a


K2_LDS = 131072
ROT = int(os.environ.get('K2ROT', '1'))
K2_START = [0, 11, 22, 32, 44, 55, 66, 77]
K2_CNT = [11, 11, 10, 12, 11, 11, 11, 11]


def gen_k2():
    a = Asm()
    e = a.emit
    WSD, SAa, SWw, XS, DSK, OUT = 8, 12, 16, 24, 28, 32
    sRB, sCB, sW = 40, 41, 42
    e("s_cmp_ge_u32 s2, 256")
    e("s_cbranch_scc1 K2_END")
    load_kernargs(a)
    e("v_and_b32 v1, 63, v0")
    e("v_lshrrev_b32 v2, 6, v0")
    e(f"v_readfirstlane_b32 s{sW}, v2")
    e("s_and_b32 s3, s2, 7")
    e("s_lshr_b32 s4, s2, 3")
    e(f"s_and_b32 s{sCB}, s4, 7")
    e("s_lshr_b32 s4, s4, 3")
    e("s_lshl_b32 s3, s3, 2")
    e(f"s_add_u32 s{sRB}, s3, s4")
    e(f"s_mul_i32 s5, s{sW}, 11")
    e(f"s_cmp_eq_u32 s{sW}, 3")
    e("s_cselect_b32 s5, 32, s5")
    e("s_cselect_b32 s6, 12, 11")
    e(f"s_cmp_eq_u32 s{sW}, 2")
    e("s_cselect_b32 s6, 10, s6")
    e("s_lshl_b32 s6, s6, 12")
    e("v_lshlrev_b32 v6, 4, v1")
    lgk0(a)
    st = Stamper(a, 31, "k2")
    st.stamp("start")
    e(f"s_mul_i32 s3, s{sRB}, 88")
    e("s_add_u32 s3, s3, s5")
    e("s_lshl_b32 s3, s3, 12")
    e(f"s_add_u32 s3, s3, {WS_AF}")
    srd_off(a, SAa, P_WS, 3, "s6")
    e(f"s_mul_i32 s3, s{sCB}, 88")
    e("s_add_u32 s3, s3, s5")
    e("s_lshl_b32 s3, s3, 12")
    e(f"s_add_u32 s3, s3, {WS_W2}")
    srd_off(a, SWw, P_WS, 3, "s6")
    ACC = 192
    FR = 32
    NBUF = int(os.environ.get("K2NB", "5"))
    NSTEP = 12

    e(f"s_and_b32 s7, s{sRB}, 3")
    e("s_mul_i32 s7, s7, 3")
    e(f"s_add_u32 s7, s7, s{sCB}")
    e("s_cmp_ge_u32 s7, 10")
    e("s_cselect_b32 s20, 10, 0")
    e("s_sub_u32 s7, s7, s20")
    e("s_lshl_b32 s7, s7, 12")
    if not ROT:
        e("s_mov_b32 s7, 0")
    e("s_lshr_b32 s21, s6, 12")

    def issue_loads(n):
        fb = FR + 32 * (n % NBUF)
        if n >= 10:
            e(f"s_cmp_gt_u32 s21, {n}")
            e("s_cselect_b32 s22, s7, 0x7ff00000")
            so = 22
        else:
            so = 7
        for t in range(4):
            e(f"buffer_load_dwordx4 {vr(fb + 4 * t, 4)}, v6, {sr(SWw, 4)}, s{so} offen offset:{1024 * t}", tag=('l', n))
            e(f"buffer_load_dwordx4 {vr(fb + 16 + 4 * t, 4)}, v6, {sr(SAa, 4)}, s{so} offen offset:{1024 * t}", tag=('l', n))
        e("s_add_u32 s7, s7, 4096")
        e("s_cmp_ge_u32 s7, s6")
        e("s_cselect_b32 s7, 0, s7")

    for n in range(NBUF - 1):
        issue_loads(n)
    srd(a, WSD, P_WS, WS_SIZE)
    srd(a, XS, P_X, 2097152)
    srd(a, DSK, P_DSK, 1024)
    srd(a, OUT, P_OUT, 4194304)
    for n in range(NSTEP):
        if n + NBUF - 1 < NSTEP:
            issue_loads(n + NBUF - 1)
        a.wait_vm(tag=('l', n))
        st.stamp(f"step {n}")
        fb = FR + 32 * (n % NBUF)
        for nt in range(4):
            for mt in range(4):
                d = ACC + 16 * nt + 4 * mt
                c = "0" if n == 0 else vr(d, 4)
                e(f"v_mfma_f32_16x16x32_bf16 {vr(d, 4)}, {vr(fb + 4 * mt, 4)}, {vr(fb + 16 + 4 * nt, 4)}, {c}")
    st.stamp("main end")
    e(f"s_lshl_b32 s3, s{sW}, 14")
    e("v_add_u32 v9, s3, v6")
    for k in range(16):
        e(f"ds_write_b128 v9, {vr(ACC + 4 * k, 4)} offset:{k * 1024}", tag='w')
    e("v_and_b32 v3, 15, v1")
    e("v_lshrrev_b32 v4, 4, v1")
    e(f"s_lshl_b32 s3, s{sRB}, 6")
    e(f"s_lshr_b32 s4, s{sW}, 1")
    e("s_lshl_b32 s4, s4, 4")
    e("s_add_u32 s3, s3, s4")
    e("v_add_u32 v8, s3, v3")
    e(f"s_lshl_b32 s4, s{sCB}, 6")
    e(f"s_and_b32 s5, s{sW}, 1")
    e("s_lshl_b32 s5, s5, 5")
    e("s_add_u32 s4, s4, s5")
    e("v_lshl_add_u32 v10, v4, 2, s4")
    e("v_lshlrev_b32 v11, 10, v8")
    e("v_lshl_add_u32 v11, v10, 1, v11")
    e("v_lshlrev_b32 v12, 1, v10")
    e("v_lshlrev_b32 v13, 3, v8")
    e(f"v_add_u32 v13, {WS_STATS}, v13")
    for m in range(2):
        e(f"buffer_load_dwordx2 {vr(32 + 2 * m, 2)}, v11, {sr(XS, 4)}, 0 offen offset:{32 * m}", tag='e')
        e(f"buffer_load_dwordx2 {vr(40 + 2 * m, 2)}, v12, {sr(DSK, 4)}, 0 offen offset:{32 * m}", tag='e')
    e(f"buffer_load_dwordx2 v[48:49], v13, {sr(WSD, 4)}, 0 offen", tag='e')
    e(f"s_lshl_b32 s3, s{sW}, 11")
    e("v_add_u32 v9, s3, v6")
    e("v_add_u32 v14, 0x10000, v9")
    a.wait_lg(n=0)
    e("s_barrier")
    for s in range(8):
        for m in range(2):
            e(f"ds_read_b128 {vr(64 + 8 * s + 4 * m, 4)}, v{9 if s < 4 else 14} offset:{(s & 3) * 16384 + m * 1024}", tag=('r', s))
    a.wait_lg(tag=('r', 1))
    for i in range(8):
        e(f"v_add_f32 v{64 + i}, v{64 + i}, v{72 + i}")
    a.wait_lg(tag=('r', 2))
    for i in range(8):
        e(f"v_add_f32 v{64 + i}, v{64 + i}, v{80 + i}")
    a.wait_lg(tag=('r', 4))
    for i in range(8):
        e(f"v_add_f32 v{88 + i}, v{88 + i}, v{96 + i}")
    a.wait_lg(tag=('r', 6))
    for i in range(8):
        e(f"v_add_f32 v{104 + i}, v{104 + i}, v{112 + i}")
    a.wait_lg(tag=('r', 7))
    for i in range(8):
        e(f"v_add_f32 v{88 + i}, v{88 + i}, v{120 + i}")
    for i in range(8):
        e(f"v_add_f32 v{88 + i}, v{88 + i}, v{104 + i}")
    st.stamp("reduced")
    a.wait_vm(tag='e')
    e("v_lshlrev_b32 v11, 1, v11")
    for m in range(2):
        for p in range(2):
            xr = 32 + 2 * m + p
            dr = 40 + 2 * m + p
            y0, y1 = 64 + 4 * m + 2 * p, 65 + 4 * m + 2 * p
            d0, d1 = 88 + 4 * m + 2 * p, 89 + 4 * m + 2 * p
            for t in (f"v_lshlrev_b32 v50, 16, v{xr}", f"v_and_b32 v51, 0xffff0000, v{xr}",
                      "v_sub_f32 v52, v50, v48", "v_sub_f32 v53, v51, v48", "v_cvt_pk_bf16_f32 v54, v52, v53",
                      "v_lshlrev_b32 v52, 16, v54", "v_and_b32 v53, 0xffff0000, v54",
                      "v_mul_f32 v52, v52, v49", "v_mul_f32 v53, v53, v49", "v_cvt_pk_bf16_f32 v54, v52, v53",
                      "v_lshlrev_b32 v52, 16, v54", "v_and_b32 v53, 0xffff0000, v54",
                      f"v_lshlrev_b32 v55, 16, v{dr}", f"v_and_b32 v56, 0xffff0000, v{dr}",
                      "v_mul_f32 v52, v52, v55", "v_mul_f32 v53, v53, v56", "v_cvt_pk_bf16_f32 v54, v52, v53",
                      "v_lshlrev_b32 v52, 16, v54", "v_and_b32 v53, 0xffff0000, v54",
                      f"v_add_f32 v{y0}, v{y0}, v52", f"v_add_f32 v{y1}, v{y1}, v53",
                      f"v_cvt_pk_bf16_f32 v54, v{d0}, v{d1}",
                      "v_lshlrev_b32 v52, 16, v54", "v_and_b32 v53, 0xffff0000, v54",
                      f"v_mul_f32 v55, {NLOG2E:#x}, v52", f"v_mul_f32 v56, {NLOG2E:#x}, v53",
                      "v_exp_f32 v55, v55", "v_exp_f32 v56, v56", "v_add_f32 v55, 1.0, v55", "v_add_f32 v56, 1.0, v56",
                      "v_rcp_f32 v55, v55", "v_rcp_f32 v56, v56", "v_mul_f32 v55, v52, v55", "v_mul_f32 v56, v53, v56",
                      "v_cvt_pk_bf16_f32 v54, v55, v56", "v_lshlrev_b32 v52, 16, v54", "v_and_b32 v53, 0xffff0000, v54",
                      f"v_mul_f32 v{y0}, v{y0}, v52", f"v_mul_f32 v{y1}, v{y1}, v53",
                      f"v_add_f32 v{y0}, v50, v{y0}", f"v_add_f32 v{y1}, v51, v{y1}"):
                e(t)
        e(f"buffer_store_dwordx4 {vr(64 + 4 * m, 4)}, v11, {sr(OUT, 4)}, 0 offen offset:{64 * m}", tag='o')
    st.stamp("end")
    st.dump(WSD, WS_STAMP + 0x100000, 2, shift=11)
    a.label("K2_END")
    e("s_endpgm")
    return a


def kd(name, nfv, acc):
    return f""".p2align 6
.amdhsa_kernel {name}
  .amdhsa_next_free_vgpr {nfv}
  .amdhsa_next_free_sgpr 102
  .amdhsa_accum_offset {acc}
  .amdhsa_group_segment_fixed_size 0
  .amdhsa_kernarg_size 128
  .amdhsa_user_sgpr_count 2
  .amdhsa_user_sgpr_kernarg_segment_ptr 1
  .amdhsa_system_sgpr_workgroup_id_x 1
  .amdhsa_float_denorm_mode_32 3
  .amdhsa_float_denorm_mode_16_64 3
.end_amdhsa_kernel
"""


def main():
    k0 = gen_k0()
    k1 = gen_k1_full()
    k2 = gen_k2()
    out = []
    out.append(f"; @launch kernel=ssm_k0_kernel grid=({K0_GRID},1,1) block=(256,1,1) lds={K0_LDS}")
    out.append(f"; @launch kernel=ssm_k1_kernel grid=(256,1,1) block=(512,1,1) lds={K1_LDS}")
    out.append(f"; @launch kernel=ssm_k2_kernel grid=(256,1,1) block=(512,1,1) lds={K2_LDS}")
    out.append('.amdgcn_target "amdgcn-amd-amdhsa--gfx950"')
    out.append(".text")
    for nm, k in (("ssm_k0_kernel", k0), ("ssm_k1_kernel", k1), ("ssm_k2_kernel", k2)):
        out.append(f".globl {nm}")
        out.append(".p2align 8")
        out.append(f".type {nm},@function")
        out.append(f"{nm}:")
        out.append(k.text())
    out.append('.section .rodata,"a"')
    out.append(kd("ssm_k0_kernel", 72, 72))
    out.append(kd("ssm_k1_kernel", 256, 96))
    out.append(kd("ssm_k2_kernel", 256, 256))
    txt = "\n".join(out)
    path = sys.argv[1] if len(sys.argv) > 1 else f"cdna_kernels/{NAME}.s"
    open(path, "w").write(txt)
    for nm, k in (("k0", k0), ("k1", k1), ("k2", k2)):
        print(nm, "lines", len(k.lines), "nops", k.nops)


if __name__ == "__main__":
    main()
```

```python
import sys, os
from asmlib import *

NAME = "recurrent_scan__ssm_conv_s5__glu_gated_glu__prompt"
WS_XF = 0x000000
WS_W1 = 0x200000
WS_W2 = 0x700000
WS_AF = 0xA00000
WS_STATS = 0x1500000
WS_AGG = 0x1510000
WS_STAMP = 0x1600000
WS_SIZE = 0x2000000

LOG2E = 0x3FB8AA3B
NLOG2E = 0xBFB8AA3B
INV2PI = 0x3E22F983

STAMP = int(os.environ.get('KSTAMP', '0'))

P_X, P_LRE, P_LIM, P_BRE, P_BIM, P_CRE, P_CIM, P_LDT = 64, 66, 68, 70, 72, 74, 76, 78
P_DSK, P_BX, P_WG, P_WU, P_WD, P_OUT, P_DBG, P_WS = 80, 82, 84, 86, 88, 90, 92, 94


class Stamper:
    def __init__(self, a, vreg, name):
        self.a = a; self.v = vreg; self.n = 0; self.name = name

    def stamp(self, name):
        if not STAMP:
            return
        a = self.a
        a.raw("s_memtime s[100:101]")
        a.raw("s_waitcnt lgkmcnt(0)")
        a.pos += 2
        a.lg = []
        a.emit(f"v_writelane_b32 v{self.v}, s100, {self.n}", defs=[('v', self.v)], uses=[])
        print("stamp", self.name, self.n, name)
        self.n += 1

    def dump(self, wsd, base, tmp, shift=10):
        if not STAMP:
            return
        a = self.a
        a.emit(f"v_lshlrev_b32 v{tmp}, 2, v0")
        a.emit(f"s_lshl_b32 s100, s2, {shift}")
        a.emit(f"s_add_u32 s100, s100, {base}")
        a.emit(f"v_add_u32 v{tmp}, s100, v{tmp}")
        a.emit(f"buffer_store_dword v{self.v}, v{tmp}, {sr(wsd, 4)}, 0 offen", tag='stamp')


def srd(a, d, base, size):
    a.emit(f"s_mov_b32 s{d}, s{base}")
    a.emit(f"s_and_b32 s{d + 1}, s{base + 1}, 0xffff")
    a.emit(f"s_mov_b32 s{d + 2}, {size}")
    a.emit(f"s_mov_b32 s{d + 3}, 0x00020000")


def srd_off(a, d, base, soff, size):
    a.emit(f"s_add_u32 s{d}, s{base}, s{soff}")
    a.emit(f"s_addc_u32 s{d + 1}, s{base + 1}, 0")
    a.emit(f"s_and_b32 s{d + 1}, s{d + 1}, 0xffff")
    a.emit(f"s_mov_b32 s{d + 2}, {size}")
    a.emit(f"s_mov_b32 s{d + 3}, 0x00020000")


def load_kernargs(a):
    a.raw("s_load_dwordx16 s[64:79], s[0:1], 0")
    a.raw("s_load_dwordx16 s[80:95], s[0:1], 64")
    a.pos += 2


def lgk0(a):
    a.raw("s_waitcnt lgkmcnt(0)")
    a.pos += 1
    a.lg = []


def vm0(a):
    a.raw("s_waitcnt vmcnt(0)")
    a.pos += 1
    a.vm = []


K0_LDS = 32768
K0_GRID = 256 + 64 * int(os.environ.get("K0WARM", "1"))


def gen_k0():
    a = Asm()
    e = a.emit
    WSD, SA, SB = 8, 12, 16
    sW = 42
    e(f"s_cmp_ge_u32 s2, {K0_GRID}")
    e("s_cbranch_scc1 K0_END")
    load_kernargs(a)
    e("v_and_b32 v1, 63, v0")
    e("v_lshrrev_b32 v2, 6, v0")
    e(f"v_readfirstlane_b32 s{sW}, v2")
    lgk0(a)
    srd(a, WSD, P_WS, WS_SIZE)
    e("s_cmp_ge_u32 s2, 128")
    e("s_cbranch_scc1 K0_NOTLN")
    JOBS = int(os.environ.get('K0JOBS', '31'))
    if not JOBS & 1:
        e("s_endpgm")
    srd(a, SA, P_X, 2097152)
    e("s_lshl_b32 s3, s2, 4")
    e(f"s_lshl_b32 s4, s{sW}, 2")
    e("s_add_u32 s3, s3, s4")
    e("s_lshl_b32 s4, s3, 10")
    e("v_lshlrev_b32 v3, 4, v1")
    e("v_add_u32 v3, s4, v3")
    for i in range(4):
        e(f"buffer_load_dwordx4 {vr(16 + 4 * i, 4)}, v3, {sr(SA, 4)}, 0 offen offset:{1024 * i}", tag=('x', i))
    e("v_mov_b32 v4, 0x3f803f80")
    e("v_mov_b32 v5, 0x00003f80")
    e("v_mov_b32 v6, 0x3f800000")
    e("s_lshr_b32 s5, s3, 5")
    e("s_lshl_b32 s5, s5, 15")
    e("s_and_b32 s6, s3, 31")
    e("s_lshl_b32 s6, s6, 4")
    e("s_add_u32 s5, s5, s6")
    e("v_lshrrev_b32 v7, 1, v1")
    e("v_lshlrev_b32 v7, 10, v7")
    e("v_and_b32 v8, 1, v1")
    e("v_lshl_add_u32 v7, v8, 9, v7")
    e("v_add_u32 v7, s5, v7")
    if WS_XF:
        e(f"v_add_u32 v7, {WS_XF}, v7")
    for i in range(4):
        a.wait_vm(tag=('x', i))
        e(f"v_dot2_f32_bf16 v{32 + 2 * i}, v{16 + 4 * i}, v4, 0")
        e(f"v_dot2_f32_bf16 v{33 + 2 * i}, v{16 + 4 * i}, v{16 + 4 * i}, 0")
        for j in range(1, 4):
            e(f"v_dot2_f32_bf16 v{32 + 2 * i}, v{16 + 4 * i + j}, v4, v{32 + 2 * i}")
            e(f"v_dot2_f32_bf16 v{33 + 2 * i}, v{16 + 4 * i + j}, v{16 + 4 * i + j}, v{33 + 2 * i}")
    for pat in ("quad_perm:[1,0,3,2]", "quad_perm:[2,3,0,1]", "row_half_mirror", "row_mirror"):
        for k in range(8):
            e(f"v_add_f32_dpp v{32 + k}, v{32 + k}, v{32 + k} {pat} row_mask:0xf bank_mask:0xf")
    for sw in ("v_permlane16_swap_b32", "v_permlane32_swap_b32"):
        for k in range(8):
            e(f"v_mov_b32 v{40 + k}, v{32 + k}")
        for k in range(8):
            e(f"{sw} v{32 + k}, v{40 + k}")
        for k in range(8):
            e(f"v_add_f32 v{32 + k}, v{32 + k}, v{40 + k}")
    for i in range(4):
        sm, sq = 32 + 2 * i, 33 + 2 * i
        e(f"v_mul_f32 v{sm}, 0x3b000000, v{sm}")
        e(f"v_mul_f32 v{sq}, 0x3b000000, v{sq}")
        e(f"v_fma_f32 v{sq}, -v{sm}, v{sm}, v{sq}")
        e(f"v_max_f32 v{sq}, 0, v{sq}")
        e(f"v_cvt_pk_bf16_f32 v{sm}, v{sm}, v{sq}")
        e(f"v_lshlrev_b32 v{56 + 2 * i}, 16, v{sm}")
        e(f"v_and_b32 v{sq}, 0xffff0000, v{sm}")
        e(f"v_add_f32 v{sq}, 0x3727c5ac, v{sq}")
        e(f"v_cvt_pk_bf16_f32 v{sq}, v{sq}, v{sq}")
        e(f"v_lshlrev_b32 v{sq}, 16, v{sq}")
        e(f"v_sqrt_f32 v{sq}, v{sq}")
        e(f"v_cvt_pk_bf16_f32 v{sq}, v{sq}, v{sq}")
        e(f"v_lshlrev_b32 v{sq}, 16, v{sq}")
        e(f"v_rcp_f32 v{52 + i}, v{sq}")
        e(f"v_fma_f32 v{sm}, -v{sq}, v{52 + i}, 1.0")
        e(f"v_fma_f32 v{52 + i}, v{sm}, v{52 + i}, v{52 + i}")
        e(f"v_sub_f32 v{48 + i}, 0, v{56 + 2 * i}")
        e(f"v_mov_b32 v{57 + 2 * i}, v{52 + i}")
    for i in range(4):
        for j in range(4):
            r = 16 + 4 * i + j
            e(f"v_dot2_f32_bf16 v{64 + 2 * j}, v{r}, v5, v{48 + i}")
            e(f"v_dot2_f32_bf16 v{65 + 2 * j}, v{r}, v6, v{48 + i}")
        for j in range(4):
            r = 16 + 4 * i + j
            e(f"v_cvt_pk_bf16_f32 v{r}, v{64 + 2 * j}, v{65 + 2 * j}")
        for j in range(4):
            r = 16 + 4 * i + j
            e(f"v_lshlrev_b32 v{64 + 2 * j}, 16, v{r}")
            e(f"v_and_b32 v{65 + 2 * j}, 0xffff0000, v{r}")
        for j in range(4):
            e(f"v_mul_f32 v{64 + 2 * j}, v{64 + 2 * j}, v{52 + i}")
            e(f"v_mul_f32 v{65 + 2 * j}, v{65 + 2 * j}, v{52 + i}")
        for j in range(4):
            r = 16 + 4 * i + j
            e(f"v_cvt_pk_bf16_f32 v{r}, v{64 + 2 * j}, v{65 + 2 * j}")
        e(f"buffer_store_dwordx4 {vr(16 + 4 * i, 4)}, v7, {sr(WSD, 4)}, 0 offen offset:{16 * i}", tag='o')
    e("s_lshl_b32 s4, s3, 3")
    e(f"s_add_u32 s4, s4, {WS_STATS}")
    e("v_mov_b32 v8, s4")
    e("s_mov_b64 exec, 1", defs=[('exec', 0)], uses=[])
    e(f"buffer_store_dwordx4 v[56:59], v8, {sr(WSD, 4)}, 0 offen", tag='o')
    e(f"buffer_store_dwordx4 v[60:63], v8, {sr(WSD, 4)}, 0 offen offset:16", tag='o')
    e("s_endpgm")
    a.label("K0_NOTLN")
    a.nop(2)
    e("s_cmp_ge_u32 s2, 256")
    e("s_cbranch_scc0 K0_GLU")
    e("s_sub_u32 s3, s2, 256")
    e("s_lshl_b32 s3, s3, 2")
    e(f"s_add_u32 s3, s3, s{sW}")
    e("v_lshlrev_b32 v3, 4, v1")
    e("s_lshl_b32 s4, s3, 11")
    e("s_mul_i32 s5, s3, 7168")
    for k, P in enumerate((P_BRE, P_BIM, P_CRE, P_CIM)):
        srd(a, SA, P, 524288)
        e(f"buffer_load_dwordx4 {vr(16 + 8 * k, 4)}, v3, {sr(SA, 4)}, s4 offen", tag='p')
        e(f"buffer_load_dwordx4 {vr(20 + 8 * k, 4)}, v3, {sr(SA, 4)}, s4 offen offset:1024", tag='p')
        a.nop(4)
    srd(a, SB, P_WD, 1835008)
    for k in range(7):
        e(f"s_add_u32 s6, s5, {1024 * k}")
        e(f"buffer_load_dwordx4 {vr(48 + 4 * (k & 3), 4)}, v3, {sr(SB, 4)}, s6 offen", tag='p')
    vm0(a)
    e("s_endpgm")
    a.label("K0_GLU")
    a.nop(2)
    if not JOBS & 2:
        e("s_endpgm")
    UPOFF = 14336
    e("s_sub_u32 s3, s2, 128")
    e("s_lshr_b32 s4, s3, 2")
    e("s_and_b32 s5, s3, 3")
    e(f"s_cmp_lt_u32 s{sW}, 2")
    e(f"s_cselect_b32 s{SA}, s{P_WG}, s{P_WU}")
    e(f"s_cselect_b32 s{SA + 1}, s{P_WG + 1}, s{P_WU + 1}")
    e(f"s_cselect_b32 s7, 0, {UPOFF}")
    e(f"s_and_b32 s{SA + 1}, s{SA + 1}, 0xffff")
    e(f"s_mov_b32 s{SA + 2}, 1835008")
    e(f"s_mov_b32 s{SA + 3}, 0x00020000")
    e(f"s_and_b32 s6, s{sW}, 1")
    e("s_mul_i32 s6, s6, 7")
    e("s_mul_i32 s20, s4, 57344")
    e("s_mul_i32 s21, s5, 896")
    e("s_add_u32 s20, s20, s21")
    e("s_movk_i32 s22, 1171")
    e("s_movk_i32 s23, 3584")
    for i in range(7):
        e(f"s_add_u32 s24, s6, {i}")
        e("s_lshl_b32 s25, s24, 6")
        e("v_add_u32 v3, s25, v1")
        e("v_mul_lo_u32 v4, v3, s22")
        e("v_lshrrev_b32 v4, 16, v4")
        e("v_mul_u32_u24 v5, 56, v4")
        e("v_sub_u32 v5, v3, v5")
        e("v_mul_lo_u32 v4, v4, s23")
        e("v_lshl_add_u32 v4, v5, 4, v4")
        e("s_lshl_b32 s25, s24, 10")
        e("s_add_u32 m0, s25, s7")
        e(f"buffer_load_dwordx4 v4, {sr(SA, 4)}, s20 offen lds", tag='d')
    e("v_lshrrev_b32 v7, 4, v1")
    e("v_and_b32 v8, 1, v7")
    e("v_lshrrev_b32 v9, 1, v7")
    e("v_bfe_u32 v10, v1, 2, 2")
    e("v_lshl_add_u32 v10, v9, 3, v10")
    e("v_mul_u32_u24 v10, 896, v10")
    e(f"v_mul_u32_u24 v8, {UPOFF}, v8")
    e("v_add_u32 v10, v10, v8")
    e("v_and_b32 v11, 1, v1")
    e("v_bfe_u32 v12, v1, 1, 1")
    e("v_lshl_add_u32 v10, v11, 4, v10")
    e("v_lshl_add_u32 v10, v12, 3, v10")
    e(f"s_mul_i32 s24, s{sW}, 224")
    e("v_add_u32 v10, s24, v10")
    e("s_lshl_b32 s24, s5, 2")
    e(f"s_add_u32 s24, s24, s{sW}")
    e("s_mul_i32 s24, s24, 294912")
    e("s_lshl_b32 s25, s4, 10")
    e("s_add_u32 s24, s24, s25")
    e(f"s_add_u32 s24, s24, {WS_W1}")
    e("v_lshlrev_b32 v11, 4, v1")
    e("v_add_u32 v11, s24, v11")
    vm0(a)
    e("s_barrier")
    for T in range(7):
        for h in range(2):
            e(f"ds_read_b64_tr_b16 {vr(16 + 4 * T + 2 * h, 2)}, v10 offset:{4 * h * 896 + 32 * T}", tag=('t', T))
    for T in range(7):
        a.wait_lg(tag=('t', T))
        e(f"s_mov_b32 s25, {32768 * T}")
        e(f"buffer_store_dwordx4 {vr(16 + 4 * T, 4)}, v11, {sr(WSD, 4)}, s25 offen", tag='o')
    e("s_endpgm")
    a.label("K0_END")
    e("s_endpgm")
    return a


K1_SCAN = 98304
SC_PITCH = 272
K1_AGGL = K1_SCAN + 128 * SC_PITCH
K1_JOB = K1_AGGL + 2048
K1_LDS = K1_JOB + 16384


def gen_k1_full():
    a = Asm()
    e = a.emit
    WSD, DBG, PLRE, PLIM, PLDT, AGG = 8, 12, 16, 20, 24, 28
    sR, sC, sW = 40, 41, 42
    TORD = [7, 8, 0, 1, 2, 3, 4, 5, 6]
    e("s_cmp_ge_u32 s2, 256")
    e("s_cbranch_scc1 K1_END")
    load_kernargs(a)
    e("v_and_b32 v1, 63, v0")
    e("v_lshrrev_b32 v2, 6, v0")
    e(f"v_readfirstlane_b32 s{sW}, v2")
    e("s_lshr_b32 s3, s2, 3")
    e("s_bfe_u32 s4, s2, 0x20001")
    e("s_lshl_b32 s4, s4, 2")
    e("s_and_b32 s5, s3, 3")
    e(f"s_add_u32 s{sR}, s4, s5")
    e("s_and_b32 s4, s2, 1")
    e("s_lshl_b32 s4, s4, 3")
    e("s_lshr_b32 s5, s3, 2")
    e(f"s_add_u32 s{sC}, s4, s5")
    e("v_lshlrev_b32 v6, 4, v1")
    e("v_and_b32 v3, 31, v1")
    e("v_lshrrev_b32 v4, 5, v1")
    lgk0(a)
    st = Stamper(a, 95, "k1")
    st.stamp("start")
    srd(a, WSD, P_WS, WS_SIZE)
    e(f"s_cmp_ge_u32 s{sW}, 4")
    e("s_cbranch_scc1 K1_COMPUTE")
    e(f"s_mul_i32 s43, s{sC}, 294912")
    e(f"s_lshl_b32 s44, s{sW}, 13")
    e("s_add_u32 s43, s43, s44")
    e(f"s_add_u32 s43, s43, {WS_W1}")

    BRE, BIM, SX, SY = 32, 36, 48, 52
    srd(a, BRE, P_BRE, 524288)
    srd(a, BIM, P_BIM, 524288)
    e(f"s_lshl_b32 s4, s{sC}, 5")
    e("v_add_u32 v5, s4, v3")
    e("v_lshlrev_b32 v5, 10, v5")
    e("v_lshl_add_u32 v5, v4, 4, v5")
    e(f"s_lshl_b32 s4, s{sW}, 8")
    e("v_add_u32 v5, s4, v5")

    def dma_tile(idx):
        T = TORD[idx]
        slot = idx % 3
        for i in range(8):
            e(f"s_add_u32 m0, s44, {slot * 32768 + i * 1024}")
            if T >= 7:
                e(f"s_movk_i32 s45, {32 * i}")
                e(f"buffer_load_dwordx4 v5, {sr(BRE if T == 7 else BIM, 4)}, s45 offen lds", tag=('w', idx))
            else:
                e(f"s_add_u32 s45, s43, {T * 32768 + i * 1024}")
                e(f"buffer_load_dwordx4 v6, {sr(WSD, 4)}, s45 offen lds", tag=('w', idx))

    dma_tile(0)
    dma_tile(1)
    srd(a, DBG, P_DBG, 256)
    srd(a, PLRE, P_LRE, 1024)
    srd(a, PLIM, P_LIM, 1024)
    srd(a, PLDT, P_LDT, 1024)
    e(f"s_lshl_b32 s4, s{sC}, 5")
    e("v_add_u32 v7, s4, v3")
    e("v_lshlrev_b32 v7, 1, v7")
    e(f"buffer_load_ushort v24, v7, {sr(PLRE, 4)}, 0 offen", tag='par')
    e(f"buffer_load_ushort v25, v7, {sr(PLIM, 4)}, 0 offen", tag='par')
    e(f"buffer_load_ushort v26, v7, {sr(PLDT, 4)}, 0 offen", tag='par')
    e(f"s_lshl_b32 s3, s{sC}, 12")
    e(f"s_add_u32 s3, s3, {WS_AGG}")
    srd_off(a, AGG, P_WS, 3, 4096)
    RAW = 32
    GA = 64

    def bar(idx):
        a.wait_vm(tag=('w', idx))
        a.wait_lg(n=0)
        e("s_barrier")
        if idx + 2 < 9:
            dma_tile(idx + 2)

    bar(0)
    a.wait_vm(tag='par')
    for t in ("v_lshlrev_b32 v24, 16, v24", "v_lshlrev_b32 v25, 16, v25", "v_lshlrev_b32 v26, 16, v26",
              f"v_mul_f32 v26, {LOG2E:#x}, v26", "v_exp_f32 v26, v26", "v_cvt_pk_bf16_f32 v26, v26, v26",
              "v_lshlrev_b32 v26, 16, v26", "v_mul_f32 v8, v26, v24", "v_mul_f32 v9, v26, v25",
              f"v_mul_f32 v8, {LOG2E:#x}, v8", "v_exp_f32 v8, v8", f"v_mul_f32 v9, {INV2PI:#x}, v9",
              "v_fract_f32 v9, v9", "v_cos_f32 v10, v9", "v_sin_f32 v11, v9",
              "v_mul_f32 v10, v8, v10", "v_mul_f32 v11, v8, v11",
              "v_add_f32 v12, -1.0, v10", "v_mul_f32 v13, v24, v24", "v_fma_f32 v13, v25, v25, v13",
              "v_rcp_f32 v14, v13", "v_fma_f32 v15, -v13, v14, 1.0", "v_fma_f32 v14, v15, v14, v14",
              "v_add_f32 v14, v14, v14", "v_mul_f32 v15, v12, v24", "v_fma_f32 v15, v11, v25, v15",
              "v_mul_f32 v16, v11, v24", "v_fma_f32 v16, -v12, v25, v16",
              "v_mul_f32 v12, v15, v14", "v_mul_f32 v13, v16, v14"):
        e(t)

    def csq(dr, di, sr_, si_):
        for t in (f"v_mul_f32 v18, v{si_}, v{si_}", f"v_mul_f32 v19, v{sr_}, v{si_}",
                  f"v_fma_f32 v{dr}, v{sr_}, v{sr_}, -v18", f"v_add_f32 v{di}, v19, v19"):
            e(t)
    csq(14, 15, 10, 11)
    for _ in range(3):
        csq(14, 15, 14, 15)
    csq(16, 17, 14, 15)
    csq(16, 17, 16, 17)
    csq(16, 17, 16, 17)
    for t in (f"s_lshl_b32 s3, s{sW}, 1", "v_add_u32 v20, s3, v4",
              f"v_mul_u32_u24 v21, {16 * SC_PITCH}, v20", "v_lshl_add_u32 v21, v3, 2, v21",
              f"v_add_u32 v21, {K1_SCAN}, v21",
              "v_lshlrev_b32 v22, 8, v20", "v_lshl_add_u32 v22, v3, 3, v22", f"v_add_u32 v22, {K1_AGGL}, v22",
              "v_lshlrev_b32 v23, 3, v3", f"v_add_u32 v23, {K1_AGGL}, v23"):
        e(t)
    bar(1)
    e("s_lshl_b32 s3, s2, 2")
    e(f"s_add_u32 s3, s3, s{sW}")
    e("s_cmp_ge_u32 s3, 448")
    e("s_cbranch_scc1 K1_JOBC")
    srd(a, SX, P_WD, 1835008)
    e("s_lshr_b32 s4, s3, 3")
    e("s_and_b32 s5, s3, 7")
    e("s_lshl_b32 s6, s4, 15")
    e("s_lshl_b32 s7, s5, 7")
    e("s_add_u32 s6, s6, s7")
    e("v_lshrrev_b32 v28, 3, v1")
    e("v_lshlrev_b32 v28, 10, v28")
    e("v_and_b32 v29, 7, v1")
    e("v_lshl_add_u32 v28, v29, 4, v28")
    e(f"s_lshl_b32 s7, s{sW}, 12")
    e(f"s_add_u32 s7, s7, {K1_JOB}")
    for i in range(4):
        e(f"s_add_u32 m0, s7, {1024 * i}")
        e(f"s_add_u32 s20, s6, {8192 * i}")
        e(f"buffer_load_dwordx4 v28, {sr(SX, 4)}, s20 offen lds", tag='job')
    e("v_lshrrev_b32 v28, 4, v1")
    e("v_bfe_u32 v29, v1, 2, 2")
    e("v_lshl_add_u32 v28, v28, 3, v29")
    e("v_lshlrev_b32 v28, 7, v28")
    e("v_and_b32 v29, 3, v1")
    e("v_lshl_add_u32 v28, v29, 3, v28")
    e("v_add_u32 v28, s7, v28")
    e("s_mul_i32 s20, s5, 88")
    e("s_add_u32 s20, s20, s4")
    e("s_add_u32 s20, s20, 32")
    e("s_lshl_b32 s20, s20, 12")
    e(f"s_add_u32 s20, s20, {WS_W2}")
    a.wait_vm(tag='job')
    for mt in range(4):
        for h in range(2):
            e(f"ds_read_b64_tr_b16 {vr(GA + 4 * mt + 2 * h, 2)}, v28 offset:{512 * h + 32 * mt}", tag=('jt', mt))
    for mt in range(4):
        a.wait_lg(tag=('jt', mt))
        e(f"buffer_store_dwordx4 {vr(GA + 4 * mt, 4)}, v6, {sr(WSD, 4)}, s20 offen offset:{1024 * mt}", tag='jo')
    e("s_branch K1_JOBDONE")
    a.label("K1_JOBC")
    a.nop(2)
    vmsave = list(a.vm)
    a.vm = [t for t in a.vm if t not in ('job', 'jo')]
    e("s_cmp_ge_u32 s3, 960")
    e("s_cbranch_scc1 K1_JOBDONE")
    e("s_sub_u32 s3, s3, 448")
    e("s_lshr_b32 s4, s3, 6")
    e("s_bfe_u32 s5, s3, 0x40002")
    e("s_bfe_u32 s6, s3, 0x10001")
    e("s_and_b32 s7, s3, 1")
    e("s_cmp_eq_u32 s6, 0")
    e(f"s_cselect_b32 s{SX}, s{P_CRE}, s{P_CIM}")
    e(f"s_cselect_b32 s{SX + 1}, s{P_CRE + 1}, s{P_CIM + 1}")
    e(f"s_and_b32 s{SX + 1}, s{SX + 1}, 0xffff")
    e(f"s_mov_b32 s{SX + 2}, 524288")
    e(f"s_mov_b32 s{SX + 3}, 0x00020000")
    e("s_lshl_b32 s20, s4, 6")
    e("s_lshl_b32 s21, s7, 5")
    e("s_add_u32 s20, s20, s21")
    e("v_and_b32 v28, 15, v1")
    e("v_add_u32 v28, s20, v28")
    e("v_lshlrev_b32 v28, 10, v28")
    e("v_lshrrev_b32 v29, 4, v1")
    e("v_lshl_add_u32 v28, v29, 4, v28")
    e("s_lshl_b32 s20, s5, 6")
    e("s_add_u32 s21, s20, 16384")
    e(f"buffer_load_dwordx4 {vr(GA, 4)}, v28, {sr(SX, 4)}, s20 offen", tag='jc')
    e(f"buffer_load_dwordx4 {vr(GA + 4, 4)}, v28, {sr(SX, 4)}, s21 offen", tag='jc')
    e("s_mul_i32 s20, s4, 88")
    e("s_lshl_b32 s21, s5, 1")
    e("s_add_u32 s20, s20, s21")
    e("s_add_u32 s20, s20, s6")
    e("s_lshl_b32 s20, s20, 12")
    e("s_lshl_b32 s21, s7, 11")
    e("s_add_u32 s20, s20, s21")
    e(f"s_add_u32 s20, s20, {WS_W2}")
    a.wait_vm(tag='jc')
    e(f"buffer_store_dwordx4 {vr(GA, 4)}, v6, {sr(WSD, 4)}, s20 offen", tag='jo')
    e(f"buffer_store_dwordx4 {vr(GA + 4, 4)}, v6, {sr(WSD, 4)}, s20 offen offset:1024", tag='jo')
    a.label("K1_JOBDONE")
    a.nop(2)
    a.vm = [('w', 2)] * 8 + [('w', 3)] * 8
    a.lg = []
    bar(2)
    bar(3)
    for i in range(16):
        e(f"ds_read_b32 v{RAW + i}, v21 offset:{i * SC_PITCH}", tag=('s', i))
        e(f"ds_read_b32 v{RAW + 16 + i}, v21 offset:{i * SC_PITCH + 128}", tag=('s', i))
    for i in range(1, 16):
        r, im, pr, pi = RAW + i, RAW + 16 + i, RAW + i - 1, RAW + 15 + i
        a.wait_lg(tag=('s', i))
        e(f"v_fma_f32 v{r}, v10, v{pr}, v{r}")
        e(f"v_fma_f32 v{im}, v10, v{pi}, v{im}")
        e(f"v_fma_f32 v{r}, -v11, v{pi}, v{r}")
        e(f"v_fma_f32 v{im}, v11, v{pr}, v{im}")
    e(f"v_mov_b32 v28, v{RAW + 15}")
    e(f"v_mov_b32 v29, v{RAW + 31}")
    e("ds_write_b64 v22, v[28:29]", tag='w')
    bar(4)
    for j in range(7):
        e(f"ds_read_b64 {vr(GA + 2 * j, 2)}, v23 offset:{256 * j}", tag=('g', j))
    for t in ("v_mov_b32 v24, 0", "v_mov_b32 v25, 0", "v_mov_b32 v26, 1.0", "v_mov_b32 v27, 0"):
        e(t)
    for j in range(7):
        gr, gi = GA + 2 * j, GA + 1 + 2 * j
        a.wait_lg(tag=('g', j))
        e(f"v_cmp_lt_u32 vcc, {j}, v20")
        for t in (f"v_fma_f32 v{gr}, v14, v24, v{gr}", f"v_fma_f32 v{gi}, v14, v25, v{gi}",
                  f"v_fma_f32 v{gr}, -v15, v25, v{gr}", f"v_fma_f32 v{gi}, v15, v24, v{gi}",
                  "v_mul_f32 v28, v14, v26", "v_mul_f32 v29, v14, v27",
                  "v_fma_f32 v28, -v15, v27, v28", "v_fma_f32 v29, v15, v26, v29",
                  f"v_cndmask_b32 v24, v24, v{gr}, vcc", f"v_cndmask_b32 v25, v25, v{gi}, vcc",
                  "v_cndmask_b32 v26, v26, v28, vcc", "v_cndmask_b32 v27, v27, v29, vcc"):
            e(t)
    for t in (f"v_fma_f32 v28, v14, v24, v{RAW + 15}", f"v_fma_f32 v29, v14, v25, v{RAW + 31}",
              "v_fma_f32 v28, -v15, v25, v28", "v_fma_f32 v29, v15, v24, v29",
              f"s_lshl_b32 s3, s{sR}, 8", "v_lshl_add_u32 v30, v3, 3, s3",
              f"s_lshl_b32 s4, s{sC}, 2", "v_mov_b32 v31, s4",
              f"s_lshl_b32 s5, 1, s{sR}", "v_mov_b32 v7, s5"):
        e(t)
    e(f"s_cmp_eq_u32 s{sW}, 3")
    e("s_cbranch_scc0 K1_NOPUB")
    e("s_mov_b32 exec_lo, 0", defs=[('exec', 0)], uses=[])
    e(f"buffer_store_dwordx2 v[28:29], v30, {sr(AGG, 4)}, 0 offen sc0 sc1", tag='pub')
    a.raw("s_waitcnt vmcnt(0)")
    a.pos += 1
    e("s_mov_b32 exec_hi, 1", defs=[('exec', 0)], uses=[])
    e(f"buffer_atomic_or v7, v31, {sr(DBG, 4)}, 0 offen sc1", tag='pub')
    e("s_mov_b64 exec, -1", defs=[('exec', 0)], uses=[])
    a.label("K1_NOPUB")
    a.nop(2)
    a.vm = [t for t in a.vm if t != 'pub']
    bar(5)
    bar(6)
    bar(7)
    bar(8)
    st.stamp("L bar8")
    e(f"s_lshl_b32 s5, 1, s{sR}")
    e("s_sub_u32 s5, s5, 1")
    a.label("K1_POLL")
    a.nop(2)
    e(f"buffer_load_dword v7, v31, {sr(DBG, 4)}, 0 offen sc0 sc1", tag='poll')
    vm0(a)
    e("v_readfirstlane_b32 s6, v7")
    e("s_and_b32 s6, s6, s5")
    e("s_cmp_eq_u32 s6, s5")
    e("s_cbranch_scc1 K1_POLLDONE")
    e("s_sleep 1")
    e("s_branch K1_POLL")
    a.label("K1_POLLDONE")
    a.nop(2)
    st.stamp("L polled")
    e("v_lshlrev_b32 v30, 3, v3")
    for i in range(15):
        e(f"buffer_load_dwordx2 {vr(GA + 2 * i, 2)}, v30, {sr(AGG, 4)}, 0 offen offset:{256 * i} sc0 sc1", tag=('c', i))
    for t in (f"s_lshl_b32 s3, s{sR}, 1", "s_mul_i32 s3, s3, 88", f"s_lshl_b32 s4, s{sC}, 1", "s_add_u32 s3, s3, s4",
              "s_lshl_b32 s3, s3, 12", f"s_add_u32 s3, s3, {WS_AF}",
              "v_lshrrev_b32 v2, 2, v20", "v_mul_u32_u24 v2, 88, v2", "v_and_b32 v31, 1, v3",
              "v_add_u32 v2, v2, v31", "v_lshlrev_b32 v2, 12, v2", "v_add_u32 v2, s3, v2",
              "v_and_b32 v7, 3, v20", "v_lshl_add_u32 v2, v7, 10, v2",
              "v_lshrrev_b32 v7, 3, v3", "v_lshl_add_u32 v2, v7, 8, v2",
              "v_and_b32 v7, 6, v3", "v_lshl_add_u32 v2, v7, 1, v2",
              "v_cmp_eq_u32 vcc, 1, v31", "v_mov_b32 v28, 0", "v_mov_b32 v29, 0"):
        e(t)
    vm0(a)
    for i in range(15):
        e(f"s_cmp_le_u32 s{sR}, {i}")
        e("s_cbranch_scc1 K1_CARRYDONE")
        gr, gi = GA + 2 * i, GA + 1 + 2 * i
        e(f"v_fma_f32 v{gr}, v16, v28, v{gr}")
        e(f"v_fma_f32 v{gi}, v16, v29, v{gi}")
        e(f"v_fma_f32 v{gr}, -v17, v29, v{gr}")
        e(f"v_fma_f32 v{gi}, v17, v28, v{gi}")
        e(f"v_mov_b32 v28, v{gr}")
        e(f"v_mov_b32 v29, v{gi}")
    a.label("K1_CARRYDONE")
    a.nop(2)
    for t in ("v_fma_f32 v24, v26, v28, v24", "v_fma_f32 v25, v26, v29, v25",
              "v_fma_f32 v24, -v27, v29, v24", "v_fma_f32 v25, v27, v28, v25"):
        e(t)
    for i in range(16):
        r, im = RAW + i, RAW + 16 + i
        for t in ("v_mul_f32 v26, v10, v24", "v_mul_f32 v27, v10, v25",
                  "v_fma_f32 v26, -v11, v25, v26", "v_fma_f32 v25, v11, v24, v27", "v_mov_b32 v24, v26",
                  f"v_add_f32 v{r}, v{r}, v24", f"v_add_f32 v{im}, v{im}, v25",
                  f"v_mul_f32 v26, v12, v{r}", f"v_mul_f32 v27, v12, v{im}",
                  f"v_fma_f32 v26, -v13, v{im}, v26", f"v_fma_f32 v27, -v13, v{r}, -v27",
                  "v_cndmask_b32 v28, v27, v26, vcc",
                  "v_mov_b32_dpp v29, v28 quad_perm:[1,0,3,2] row_mask:0xf bank_mask:0xf",
                  "v_cndmask_b32 v28, v26, v29, vcc", "v_cndmask_b32 v29, v29, v27, vcc",
                  f"v_cvt_pk_bf16_f32 v{r}, v28, v29"):
            e(t)
        e(f"buffer_store_dword v{r}, v2, {sr(WSD, 4)}, 0 offen offset:{16 * i}", tag='hs')
    st.stamp("L end")
    st.dump(WSD, WS_STAMP, 2, shift=11)
    e("s_endpgm")

    a.label("K1_COMPUTE")
    a.nop(4)
    a.vm = []
    a.lg = []
    st.n = 1
    e(f"s_sub_u32 s{sW}, s{sW}, 4")
    e(f"s_lshl_b32 s3, s{sR}, 2")
    e(f"s_add_u32 s3, s3, s{sW}")
    e("s_lshl_b32 s3, s3, 15")
    if WS_XF:
        e(f"s_add_u32 s3, s3, {WS_XF}")
    for s in range(32):
        if s % 4 == 0:
            e(f"s_add_u32 s4, s3, {1024 * s}")
        e(f"buffer_load_dwordx4 {ar(32 + 4 * s, 4)}, v6, {sr(WSD, 4)}, s4 offen offset:{1024 * (s % 4)}", tag=('x', s))
    e(f"v_add_u32 v5, 0x10000, v6")
    for t in (f"s_lshl_b32 s3, s{sW}, 5", "v_add_u32 v7, s3, v3", f"v_mul_u32_u24 v7, {SC_PITCH}, v7",
              "v_lshl_add_u32 v7, v4, 4, v7", f"v_add_u32 v7, {K1_SCAN}, v7",
              f"s_lshl_b32 s3, s{sR}, 1", f"s_lshr_b32 s4, s{sW}, 1", "s_add_u32 s3, s3, s4",
              "s_mul_i32 s3, s3, 88", "s_add_u32 s3, s3, 32", "s_lshl_b32 s3, s3, 12",
              f"s_and_b32 s4, s{sW}, 1", "s_lshl_b32 s4, s4, 11", "s_add_u32 s3, s3, s4",
              f"s_add_u32 s3, s3, {WS_AF}",
              "v_lshrrev_b32 v2, 4, v3", "v_lshlrev_b32 v2, 10, v2", "v_and_b32 v8, 15, v3",
              "v_lshl_add_u32 v2, v8, 4, v2", "v_add_u32 v2, s3, v2",
              f"s_mul_i32 s46, s{sC}, 14", "v_add_u32 v8, s46, v4"):
        e(t)
    ACC = [32, 48]
    D = int(os.environ.get('K1D', '5'))
    RING = 8

    def ops_dump(acc, part):
        return [(lambda j=j: e(f"ds_write_b128 v7, {vr(acc + 4 * j, 4)} offset:{part * 128 + j * 32}", tag='w')) for j in range(4)]

    def ops_glu(acc, T):
        g, u = acc, acc + 8
        o = 64 + 4 * (T & 1)
        t0 = 72
        L = []
        w = L.append
        for p in range(4):
            w(lambda p=p: e(f"v_cvt_pk_bf16_f32 v{t0 + p}, v{g + 2 * p}, v{g + 2 * p + 1}"))
            w(lambda p=p: e(f"v_cvt_pk_bf16_f32 v{t0 + 4 + p}, v{u + 2 * p}, v{u + 2 * p + 1}"))
        for p in range(4):
            w(lambda p=p: e(f"v_lshlrev_b32 v{g + 2 * p}, 16, v{t0 + p}"))
            w(lambda p=p: e(f"v_and_b32 v{g + 2 * p + 1}, 0xffff0000, v{t0 + p}"))
        for i in range(8):
            w(lambda i=i: e(f"v_mul_f32 v{g + i}, {NLOG2E:#x}, v{g + i}"))
        for i in range(8):
            w(lambda i=i: e(f"v_exp_f32 v{g + i}, v{g + i}"))
            p = i // 2
            if i % 2 == 0:
                w(lambda p=p: e(f"v_lshlrev_b32 v{u + 2 * p}, 16, v{t0 + 4 + p}"))
            else:
                w(lambda p=p: e(f"v_and_b32 v{u + 2 * p + 1}, 0xffff0000, v{t0 + 4 + p}"))
        for i in range(8):
            w(lambda i=i: e(f"v_add_f32 v{g + i}, 1.0, v{g + i}"))
        for i in range(8):
            w(lambda i=i: e(f"v_rcp_f32 v{g + i}, v{g + i}"))
        w(lambda: e(f"v_add_u32 v80, {2 * T}, v8"))
        w(lambda: e("v_lshrrev_b32 v81, 2, v80"))
        w(lambda: e("v_and_b32 v80, 3, v80"))
        w(lambda: e("v_lshl_add_u32 v81, v81, 12, v2"))
        w(lambda: e(f"v_lshl_add_u32 v{82 + (T & 1)}, v80, 8, v81"))
        for p in range(4):
            w(lambda p=p: e(f"v_cvt_pk_bf16_f32 v{t0 + p}, v{g + 2 * p}, v{g + 2 * p + 1}"))
        for p in range(4):
            w(lambda p=p: e(f"v_lshlrev_b32 v{g + 2 * p}, 16, v{t0 + p}"))
            w(lambda p=p: e(f"v_and_b32 v{g + 2 * p + 1}, 0xffff0000, v{t0 + p}"))
        for i in range(8):
            w(lambda i=i: e(f"v_mul_f32 v{g + i}, v{g + i}, v{u + i}"))
        for p in range(4):
            w(lambda p=p: e(f"v_cvt_pk_bf16_f32 v{o + p}, v{g + 2 * p}, v{g + 2 * p + 1}"))
        w(lambda: e(f"buffer_store_dwordx4 {vr(o, 4)}, v{82 + (T & 1)}, {sr(WSD, 4)}, 0 offen", tag='hg'))
        return L

    def frag(n):
        return ar(4 * (n % RING), 4)

    NF = 9 * 32

    def issue_read(n):
        idx, s = divmod(n, 32)
        slot = idx % 3
        if s == 0:
            e("s_barrier")
            st.stamp(f"barrier {idx}")
        base = 5 if slot == 2 else 6
        off = (slot & 1) * 32768 + s * 1024 if slot < 2 else s * 1024
        e(f"ds_read_b128 {frag(n)}, v{base} offset:{off}", tag=('f', n))

    for n in range(D):
        issue_read(n)
    pend = []
    for n in range(NF):
        idx, s = divmod(n, 32)
        acc = ACC[idx & 1]
        if s == 0:
            assert not pend
            if idx >= 1:
                pacc = ACC[(idx - 1) & 1]
                pT = TORD[idx - 1]
                pend = ops_dump(pacc, pT - 7) if pT >= 7 else ops_glu(pacc, pT)
        if idx == 0:
            a.wait_vm(tag=('x', s))
        a.wait_lg(tag=('f', n))
        c = "0" if s == 0 else vr(acc, 16)
        e(f"v_mfma_f32_32x32x16_bf16 {vr(acc, 16)}, {frag(n)}, {ar(32 + 4 * s, 4)}, {c}")
        if s >= 2:
            rem = max(1, (32 - D) - s)
            k = (len(pend) + rem - 1) // rem if pend else 0
            for _ in range(k):
                if pend:
                    pend.pop(0)()
        if n + D < NF:
            if (n + D) % 32 == 0:
                assert not pend
                a.wait_lg(tag='w')
            issue_read(n + D)
    st.stamp("main end")
    for op in ops_glu(ACC[8 & 1], TORD[8]):
        op()
    st.stamp("end")
    st.dump(WSD, WS_STAMP, 2, shift=11)
    a.label("K1_END")
    e("s_endpgm")
    return a


K2_LDS = 131072
ROT = int(os.environ.get('K2ROT', '1'))
K2_START = [0, 11, 22, 32, 44, 55, 66, 77]
K2_CNT = [11, 11, 10, 12, 11, 11, 11, 11]


def gen_k2():
    a = Asm()
    e = a.emit
    WSD, SAa, SWw, XS, DSK, OUT = 8, 12, 16, 24, 28, 32
    sRB, sCB, sW = 40, 41, 42
    e("s_cmp_ge_u32 s2, 256")
    e("s_cbranch_scc1 K2_END")
    load_kernargs(a)
    e("v_and_b32 v1, 63, v0")
    e("v_lshrrev_b32 v2, 6, v0")
    e(f"v_readfirstlane_b32 s{sW}, v2")
    e("s_and_b32 s3, s2, 7")
    e("s_lshr_b32 s4, s2, 3")
    e(f"s_and_b32 s{sCB}, s4, 7")
    e("s_lshr_b32 s4, s4, 3")
    e("s_lshl_b32 s3, s3, 2")
    e(f"s_add_u32 s{sRB}, s3, s4")
    e(f"s_mul_i32 s5, s{sW}, 11")
    e(f"s_cmp_eq_u32 s{sW}, 3")
    e("s_cselect_b32 s5, 32, s5")
    e("s_cselect_b32 s6, 12, 11")
    e(f"s_cmp_eq_u32 s{sW}, 2")
    e("s_cselect_b32 s6, 10, s6")
    e("s_lshl_b32 s6, s6, 12")
    e("v_lshlrev_b32 v6, 4, v1")
    lgk0(a)
    st = Stamper(a, 31, "k2")
    st.stamp("start")
    e(f"s_mul_i32 s3, s{sRB}, 88")
    e("s_add_u32 s3, s3, s5")
    e("s_lshl_b32 s3, s3, 12")
    e(f"s_add_u32 s3, s3, {WS_AF}")
    srd_off(a, SAa, P_WS, 3, "s6")
    e(f"s_mul_i32 s3, s{sCB}, 88")
    e("s_add_u32 s3, s3, s5")
    e("s_lshl_b32 s3, s3, 12")
    e(f"s_add_u32 s3, s3, {WS_W2}")
    srd_off(a, SWw, P_WS, 3, "s6")
    ACC = 192
    FR = 32
    NBUF = int(os.environ.get("K2NB", "5"))
    NSTEP = 12

    e(f"s_and_b32 s7, s{sRB}, 3")
    e("s_mul_i32 s7, s7, 3")
    e(f"s_add_u32 s7, s7, s{sCB}")
    e("s_cmp_ge_u32 s7, 10")
    e("s_cselect_b32 s20, 10, 0")
    e("s_sub_u32 s7, s7, s20")
    e("s_lshl_b32 s7, s7, 12")
    if not ROT:
        e("s_mov_b32 s7, 0")
    e("s_lshr_b32 s21, s6, 12")

    def issue_loads(n):
        fb = FR + 32 * (n % NBUF)
        if n >= 10:
            e(f"s_cmp_gt_u32 s21, {n}")
            e("s_cselect_b32 s22, s7, 0x7ff00000")
            so = 22
        else:
            so = 7
        for t in range(4):
            e(f"buffer_load_dwordx4 {vr(fb + 4 * t, 4)}, v6, {sr(SWw, 4)}, s{so} offen offset:{1024 * t}", tag=('l', n))
            e(f"buffer_load_dwordx4 {vr(fb + 16 + 4 * t, 4)}, v6, {sr(SAa, 4)}, s{so} offen offset:{1024 * t}", tag=('l', n))
        e("s_add_u32 s7, s7, 4096")
        e("s_cmp_ge_u32 s7, s6")
        e("s_cselect_b32 s7, 0, s7")

    for n in range(NBUF - 1):
        issue_loads(n)
    srd(a, WSD, P_WS, WS_SIZE)
    srd(a, XS, P_X, 2097152)
    srd(a, DSK, P_DSK, 1024)
    srd(a, OUT, P_OUT, 4194304)
    for n in range(NSTEP):
        if n + NBUF - 1 < NSTEP:
            issue_loads(n + NBUF - 1)
        a.wait_vm(tag=('l', n))
        st.stamp(f"step {n}")
        fb = FR + 32 * (n % NBUF)
        for nt in range(4):
            for mt in range(4):
                d = ACC + 16 * nt + 4 * mt
                c = "0" if n == 0 else vr(d, 4)
                e(f"v_mfma_f32_16x16x32_bf16 {vr(d, 4)}, {vr(fb + 4 * mt, 4)}, {vr(fb + 16 + 4 * nt, 4)}, {c}")
    st.stamp("main end")
    e(f"s_lshl_b32 s3, s{sW}, 14")
    e("v_add_u32 v9, s3, v6")
    for k in range(16):
        e(f"ds_write_b128 v9, {vr(ACC + 4 * k, 4)} offset:{k * 1024}", tag='w')
    e("v_and_b32 v3, 15, v1")
    e("v_lshrrev_b32 v4, 4, v1")
    e(f"s_lshl_b32 s3, s{sRB}, 6")
    e(f"s_lshr_b32 s4, s{sW}, 1")
    e("s_lshl_b32 s4, s4, 4")
    e("s_add_u32 s3, s3, s4")
    e("v_add_u32 v8, s3, v3")
    e(f"s_lshl_b32 s4, s{sCB}, 6")
    e(f"s_and_b32 s5, s{sW}, 1")
    e("s_lshl_b32 s5, s5, 5")
    e("s_add_u32 s4, s4, s5")
    e("v_lshl_add_u32 v10, v4, 2, s4")
    e("v_lshlrev_b32 v11, 10, v8")
    e("v_lshl_add_u32 v11, v10, 1, v11")
    e("v_lshlrev_b32 v12, 1, v10")
    e("v_lshlrev_b32 v13, 3, v8")
    e(f"v_add_u32 v13, {WS_STATS}, v13")
    for m in range(2):
        e(f"buffer_load_dwordx2 {vr(32 + 2 * m, 2)}, v11, {sr(XS, 4)}, 0 offen offset:{32 * m}", tag='e')
        e(f"buffer_load_dwordx2 {vr(40 + 2 * m, 2)}, v12, {sr(DSK, 4)}, 0 offen offset:{32 * m}", tag='e')
    e(f"buffer_load_dwordx2 v[48:49], v13, {sr(WSD, 4)}, 0 offen", tag='e')
    e(f"s_lshl_b32 s3, s{sW}, 11")
    e("v_add_u32 v9, s3, v6")
    e("v_add_u32 v14, 0x10000, v9")
    a.wait_lg(n=0)
    e("s_barrier")
    for s in range(8):
        for m in range(2):
            e(f"ds_read_b128 {vr(64 + 8 * s + 4 * m, 4)}, v{9 if s < 4 else 14} offset:{(s & 3) * 16384 + m * 1024}", tag=('r', s))
    a.wait_lg(tag=('r', 1))
    for i in range(8):
        e(f"v_add_f32 v{64 + i}, v{64 + i}, v{72 + i}")
    a.wait_lg(tag=('r', 2))
    for i in range(8):
        e(f"v_add_f32 v{64 + i}, v{64 + i}, v{80 + i}")
    a.wait_lg(tag=('r', 4))
    for i in range(8):
        e(f"v_add_f32 v{88 + i}, v{88 + i}, v{96 + i}")
    a.wait_lg(tag=('r', 6))
    for i in range(8):
        e(f"v_add_f32 v{104 + i}, v{104 + i}, v{112 + i}")
    a.wait_lg(tag=('r', 7))
    for i in range(8):
        e(f"v_add_f32 v{88 + i}, v{88 + i}, v{120 + i}")
    for i in range(8):
        e(f"v_add_f32 v{88 + i}, v{88 + i}, v{104 + i}")
    st.stamp("reduced")
    a.wait_vm(tag='e')
    e("v_lshlrev_b32 v11, 1, v11")
    for m in range(2):
        for p in range(2):
            xr = 32 + 2 * m + p
            dr = 40 + 2 * m + p
            y0, y1 = 64 + 4 * m + 2 * p, 65 + 4 * m + 2 * p
            d0, d1 = 88 + 4 * m + 2 * p, 89 + 4 * m + 2 * p
            for t in (f"v_lshlrev_b32 v50, 16, v{xr}", f"v_and_b32 v51, 0xffff0000, v{xr}",
                      "v_sub_f32 v52, v50, v48", "v_sub_f32 v53, v51, v48", "v_cvt_pk_bf16_f32 v54, v52, v53",
                      "v_lshlrev_b32 v52, 16, v54", "v_and_b32 v53, 0xffff0000, v54",
                      "v_mul_f32 v52, v52, v49", "v_mul_f32 v53, v53, v49", "v_cvt_pk_bf16_f32 v54, v52, v53",
                      "v_lshlrev_b32 v52, 16, v54", "v_and_b32 v53, 0xffff0000, v54",
                      f"v_lshlrev_b32 v55, 16, v{dr}", f"v_and_b32 v56, 0xffff0000, v{dr}",
                      "v_mul_f32 v52, v52, v55", "v_mul_f32 v53, v53, v56", "v_cvt_pk_bf16_f32 v54, v52, v53",
                      "v_lshlrev_b32 v52, 16, v54", "v_and_b32 v53, 0xffff0000, v54",
                      f"v_add_f32 v{y0}, v{y0}, v52", f"v_add_f32 v{y1}, v{y1}, v53",
                      f"v_cvt_pk_bf16_f32 v54, v{d0}, v{d1}",
                      "v_lshlrev_b32 v52, 16, v54", "v_and_b32 v53, 0xffff0000, v54",
                      f"v_mul_f32 v55, {NLOG2E:#x}, v52", f"v_mul_f32 v56, {NLOG2E:#x}, v53",
                      "v_exp_f32 v55, v55", "v_exp_f32 v56, v56", "v_add_f32 v55, 1.0, v55", "v_add_f32 v56, 1.0, v56",
                      "v_rcp_f32 v55, v55", "v_rcp_f32 v56, v56", "v_mul_f32 v55, v52, v55", "v_mul_f32 v56, v53, v56",
                      "v_cvt_pk_bf16_f32 v54, v55, v56", "v_lshlrev_b32 v52, 16, v54", "v_and_b32 v53, 0xffff0000, v54",
                      f"v_mul_f32 v{y0}, v{y0}, v52", f"v_mul_f32 v{y1}, v{y1}, v53",
                      f"v_add_f32 v{y0}, v50, v{y0}", f"v_add_f32 v{y1}, v51, v{y1}"):
                e(t)
        e(f"buffer_store_dwordx4 {vr(64 + 4 * m, 4)}, v11, {sr(OUT, 4)}, 0 offen offset:{64 * m}", tag='o')
    st.stamp("end")
    st.dump(WSD, WS_STAMP + 0x100000, 2, shift=11)
    a.label("K2_END")
    e("s_endpgm")
    return a


def kd(name, nfv, acc):
    return f""".p2align 6
.amdhsa_kernel {name}
  .amdhsa_next_free_vgpr {nfv}
  .amdhsa_next_free_sgpr 102
  .amdhsa_accum_offset {acc}
  .amdhsa_group_segment_fixed_size 0
  .amdhsa_kernarg_size 128
  .amdhsa_user_sgpr_count 2
  .amdhsa_user_sgpr_kernarg_segment_ptr 1
  .amdhsa_system_sgpr_workgroup_id_x 1
  .amdhsa_float_denorm_mode_32 3
  .amdhsa_float_denorm_mode_16_64 3
.end_amdhsa_kernel
"""


def main():
    k0 = gen_k0()
    k1 = gen_k1_full()
    k2 = gen_k2()
    out = []
    out.append(f"; @launch kernel=ssm_k0_kernel grid=({K0_GRID},1,1) block=(256,1,1) lds={K0_LDS}")
    out.append(f"; @launch kernel=ssm_k1_kernel grid=(256,1,1) block=(512,1,1) lds={K1_LDS}")
    out.append(f"; @launch kernel=ssm_k2_kernel grid=(256,1,1) block=(512,1,1) lds={K2_LDS}")
    out.append('.amdgcn_target "amdgcn-amd-amdhsa--gfx950"')
    out.append(".text")
    for nm, k in (("ssm_k0_kernel", k0), ("ssm_k1_kernel", k1), ("ssm_k2_kernel", k2)):
        out.append(f".globl {nm}")
        out.append(".p2align 8")
        out.append(f".type {nm},@function")
        out.append(f"{nm}:")
        out.append(k.text())
    out.append('.section .rodata,"a"')
    out.append(kd("ssm_k0_kernel", 72, 72))
    out.append(kd("ssm_k1_kernel", 256, 96))
    out.append(kd("ssm_k2_kernel", 256, 256))
    txt = "\n".join(out)
    path = sys.argv[1] if len(sys.argv) > 1 else f"cdna_kernels/{NAME}.s"
    open(path, "w").write(txt)
    for nm, k in (("k0", k0), ("k1", k1), ("k2", k2)):
        print(nm, "lines", len(k.lines), "nops", k.nops)


if __name__ == "__main__":
    main()
```

```python
import sys, os
from asmlib import *

NAME = "recurrent_scan__ssm_conv_s5__glu_gated_glu__prompt"
WS_XF = 0x000000
WS_W1 = 0x200000
WS_W2 = 0x700000
WS_AF = 0xA00000
WS_STATS = 0x1500000
WS_AGG = 0x1510000
WS_STAMP = 0x1600000
WS_SIZE = 0x2000000

LOG2E = 0x3FB8AA3B
NLOG2E = 0xBFB8AA3B
INV2PI = 0x3E22F983

STAMP = int(os.environ.get('KSTAMP', '0'))

P_X, P_LRE, P_LIM, P_BRE, P_BIM, P_CRE, P_CIM, P_LDT = 64, 66, 68, 70, 72, 74, 76, 78
P_DSK, P_BX, P_WG, P_WU, P_WD, P_OUT, P_DBG, P_WS = 80, 82, 84, 86, 88, 90, 92, 94


class Stamper:
    def __init__(self, a, vreg, name):
        self.a = a; self.v = vreg; self.n = 0; self.name = name

    def stamp(self, name):
        if not STAMP:
            return
        a = self.a
        a.raw("s_memtime s[100:101]")
        a.raw("s_waitcnt lgkmcnt(0)")
        a.pos += 2
        a.lg = []
        a.emit(f"v_writelane_b32 v{self.v}, s100, {self.n}", defs=[('v', self.v)], uses=[])
        print("stamp", self.name, self.n, name)
        self.n += 1

    def rt(self, slot):
        if not STAMP:
            return
        a = self.a
        a.raw("s_memrealtime s[100:101]")
        a.raw("s_waitcnt lgkmcnt(0)")
        a.pos += 2
        a.lg = []
        a.emit(f"v_writelane_b32 v{self.v}, s100, {slot}", defs=[('v', self.v)], uses=[])

    def dump(self, wsd, base, tmp, shift=10):
        if not STAMP:
            return
        a = self.a
        a.emit(f"v_lshlrev_b32 v{tmp}, 2, v0")
        a.emit(f"s_lshl_b32 s100, s2, {shift}")
        a.emit(f"s_add_u32 s100, s100, {base}")
        a.emit(f"v_add_u32 v{tmp}, s100, v{tmp}")
        a.emit(f"buffer_store_dword v{self.v}, v{tmp}, {sr(wsd, 4)}, 0 offen", tag='stamp')


def srd(a, d, base, size):
    a.emit(f"s_mov_b32 s{d}, s{base}")
    a.emit(f"s_and_b32 s{d + 1}, s{base + 1}, 0xffff")
    a.emit(f"s_mov_b32 s{d + 2}, {size}")
    a.emit(f"s_mov_b32 s{d + 3}, 0x00020000")


def srd_off(a, d, base, soff, size):
    a.emit(f"s_add_u32 s{d}, s{base}, s{soff}")
    a.emit(f"s_addc_u32 s{d + 1}, s{base + 1}, 0")
    a.emit(f"s_and_b32 s{d + 1}, s{d + 1}, 0xffff")
    a.emit(f"s_mov_b32 s{d + 2}, {size}")
    a.emit(f"s_mov_b32 s{d + 3}, 0x00020000")


def load_kernargs(a):
    a.raw("s_load_dwordx16 s[64:79], s[0:1], 0")
    a.raw("s_load_dwordx16 s[80:95], s[0:1], 64")
    a.pos += 2


def lgk0(a):
    a.raw("s_waitcnt lgkmcnt(0)")
    a.pos += 1
    a.lg = []


def vm0(a):
    a.raw("s_waitcnt vmcnt(0)")
    a.pos += 1
    a.vm = []


K0_LDS = 32768
K0_GRID = 256 + 64 * int(os.environ.get("K0WARM", "1"))


def gen_k0():
    a = Asm()
    e = a.emit
    WSD, SA, SB = 8, 12, 16
    sW = 42
    e(f"s_cmp_ge_u32 s2, {K0_GRID}")
    e("s_cbranch_scc1 K0_END")
    load_kernargs(a)
    e("v_and_b32 v1, 63, v0")
    e("v_lshrrev_b32 v2, 6, v0")
    e(f"v_readfirstlane_b32 s{sW}, v2")
    lgk0(a)
    srd(a, WSD, P_WS, WS_SIZE)
    e("s_cmp_ge_u32 s2, 256")
    e("s_cbranch_scc1 K0_NOZERO")
    e(f"s_cmp_eq_u32 s{sW}, 0")
    e("s_cbranch_scc0 K0_NOZERO")
    e("s_lshl_b32 s3, s2, 8")
    e(f"s_add_u32 s3, s3, {WS_AGG}")
    e("v_lshlrev_b32 v3, 2, v1")
    e("v_mov_b32 v4, 0")
    e(f"buffer_store_dword v4, v3, {sr(WSD, 4)}, s3 offen", tag='z')
    a.label("K0_NOZERO")
    a.nop(2)
    a.vm = []
    e("s_cmp_ge_u32 s2, 128")
    e("s_cbranch_scc1 K0_NOTLN")
    JOBS = int(os.environ.get('K0JOBS', '31'))
    if not JOBS & 1:
        e("s_endpgm")
    srd(a, SA, P_X, 2097152)
    e("s_lshl_b32 s3, s2, 4")
    e(f"s_lshl_b32 s4, s{sW}, 2")
    e("s_add_u32 s3, s3, s4")
    e("s_lshl_b32 s4, s3, 10")
    e("v_lshlrev_b32 v3, 4, v1")
    e("v_add_u32 v3, s4, v3")
    for i in range(4):
        e(f"buffer_load_dwordx4 {vr(16 + 4 * i, 4)}, v3, {sr(SA, 4)}, 0 offen offset:{1024 * i}", tag=('x', i))
    e("v_mov_b32 v4, 0x3f803f80")
    e("v_mov_b32 v5, 0x00003f80")
    e("v_mov_b32 v6, 0x3f800000")
    e("s_lshr_b32 s5, s3, 5")
    e("s_lshl_b32 s5, s5, 15")
    e("s_and_b32 s6, s3, 31")
    e("s_lshl_b32 s6, s6, 4")
    e("s_add_u32 s5, s5, s6")
    e("v_lshrrev_b32 v7, 1, v1")
    e("v_lshlrev_b32 v7, 10, v7")
    e("v_and_b32 v8, 1, v1")
    e("v_lshl_add_u32 v7, v8, 9, v7")
    e("v_add_u32 v7, s5, v7")
    if WS_XF:
        e(f"v_add_u32 v7, {WS_XF}, v7")
    for i in range(4):
        a.wait_vm(tag=('x', i))
        e(f"v_dot2_f32_bf16 v{32 + 2 * i}, v{16 + 4 * i}, v4, 0")
        e(f"v_dot2_f32_bf16 v{33 + 2 * i}, v{16 + 4 * i}, v{16 + 4 * i}, 0")
        for j in range(1, 4):
            e(f"v_dot2_f32_bf16 v{32 + 2 * i}, v{16 + 4 * i + j}, v4, v{32 + 2 * i}")
            e(f"v_dot2_f32_bf16 v{33 + 2 * i}, v{16 + 4 * i + j}, v{16 + 4 * i + j}, v{33 + 2 * i}")
    for pat in ("quad_perm:[1,0,3,2]", "quad_perm:[2,3,0,1]", "row_half_mirror", "row_mirror"):
        for k in range(8):
            e(f"v_add_f32_dpp v{32 + k}, v{32 + k}, v{32 + k} {pat} row_mask:0xf bank_mask:0xf")
    for sw in ("v_permlane16_swap_b32", "v_permlane32_swap_b32"):
        for k in range(8):
            e(f"v_mov_b32 v{40 + k}, v{32 + k}")
        for k in range(8):
            e(f"{sw} v{32 + k}, v{40 + k}")
        for k in range(8):
            e(f"v_add_f32 v{32 + k}, v{32 + k}, v{40 + k}")
    for i in range(4):
        sm, sq = 32 + 2 * i, 33 + 2 * i
        e(f"v_mul_f32 v{sm}, 0x3b000000, v{sm}")
        e(f"v_mul_f32 v{sq}, 0x3b000000, v{sq}")
        e(f"v_fma_f32 v{sq}, -v{sm}, v{sm}, v{sq}")
        e(f"v_max_f32 v{sq}, 0, v{sq}")
        e(f"v_cvt_pk_bf16_f32 v{sm}, v{sm}, v{sq}")
        e(f"v_lshlrev_b32 v{56 + 2 * i}, 16, v{sm}")
        e(f"v_and_b32 v{sq}, 0xffff0000, v{sm}")
        e(f"v_add_f32 v{sq}, 0x3727c5ac, v{sq}")
        e(f"v_cvt_pk_bf16_f32 v{sq}, v{sq}, v{sq}")
        e(f"v_lshlrev_b32 v{sq}, 16, v{sq}")
        e(f"v_sqrt_f32 v{sq}, v{sq}")
        e(f"v_cvt_pk_bf16_f32 v{sq}, v{sq}, v{sq}")
        e(f"v_lshlrev_b32 v{sq}, 16, v{sq}")
        e(f"v_rcp_f32 v{52 + i}, v{sq}")
        e(f"v_fma_f32 v{sm}, -v{sq}, v{52 + i}, 1.0")
        e(f"v_fma_f32 v{52 + i}, v{sm}, v{52 + i}, v{52 + i}")
        e(f"v_sub_f32 v{48 + i}, 0, v{56 + 2 * i}")
        e(f"v_mov_b32 v{57 + 2 * i}, v{52 + i}")
    for i in range(4):
        for j in range(4):
            r = 16 + 4 * i + j
            e(f"v_dot2_f32_bf16 v{64 + 2 * j}, v{r}, v5, v{48 + i}")
            e(f"v_dot2_f32_bf16 v{65 + 2 * j}, v{r}, v6, v{48 + i}")
        for j in range(4):
            r = 16 + 4 * i + j
            e(f"v_cvt_pk_bf16_f32 v{r}, v{64 + 2 * j}, v{65 + 2 * j}")
        for j in range(4):
            r = 16 + 4 * i + j
            e(f"v_lshlrev_b32 v{64 + 2 * j}, 16, v{r}")
            e(f"v_and_b32 v{65 + 2 * j}, 0xffff0000, v{r}")
        for j in range(4):
            e(f"v_mul_f32 v{64 + 2 * j}, v{64 + 2 * j}, v{52 + i}")
            e(f"v_mul_f32 v{65 + 2 * j}, v{65 + 2 * j}, v{52 + i}")
        for j in range(4):
            r = 16 + 4 * i + j
            e(f"v_cvt_pk_bf16_f32 v{r}, v{64 + 2 * j}, v{65 + 2 * j}")
        e(f"buffer_store_dwordx4 {vr(16 + 4 * i, 4)}, v7, {sr(WSD, 4)}, 0 offen offset:{16 * i}", tag='o')
    e("s_lshl_b32 s4, s3, 3")
    e(f"s_add_u32 s4, s4, {WS_STATS}")
    e("v_mov_b32 v8, s4")
    e("s_mov_b64 exec, 1", defs=[('exec', 0)], uses=[])
    e(f"buffer_store_dwordx4 v[56:59], v8, {sr(WSD, 4)}, 0 offen", tag='o')
    e(f"buffer_store_dwordx4 v[60:63], v8, {sr(WSD, 4)}, 0 offen offset:16", tag='o')
    e("s_endpgm")
    a.label("K0_NOTLN")
    a.nop(2)
    e("s_cmp_ge_u32 s2, 256")
    e("s_cbranch_scc0 K0_GLU")
    e("s_sub_u32 s3, s2, 256")
    e("s_lshl_b32 s3, s3, 2")
    e(f"s_add_u32 s3, s3, s{sW}")
    e("v_lshlrev_b32 v3, 4, v1")
    e("s_lshl_b32 s4, s3, 11")
    e("s_mul_i32 s5, s3, 7168")
    for k, P in enumerate((P_BRE, P_BIM, P_CRE, P_CIM)):
        srd(a, SA, P, 524288)
        e(f"buffer_load_dwordx4 {vr(16 + 8 * k, 4)}, v3, {sr(SA, 4)}, s4 offen", tag='p')
        e(f"buffer_load_dwordx4 {vr(20 + 8 * k, 4)}, v3, {sr(SA, 4)}, s4 offen offset:1024", tag='p')
        a.nop(4)
    srd(a, SB, P_WD, 1835008)
    for k in range(7):
        e(f"s_add_u32 s6, s5, {1024 * k}")
        e(f"buffer_load_dwordx4 {vr(48 + 4 * (k & 3), 4)}, v3, {sr(SB, 4)}, s6 offen", tag='p')
    vm0(a)
    e("s_endpgm")
    a.label("K0_GLU")
    a.nop(2)
    if not JOBS & 2:
        e("s_endpgm")
    UPOFF = 14336
    e("s_sub_u32 s3, s2, 128")
    e("s_lshr_b32 s4, s3, 2")
    e("s_and_b32 s5, s3, 3")
    e(f"s_cmp_lt_u32 s{sW}, 2")
    e(f"s_cselect_b32 s{SA}, s{P_WG}, s{P_WU}")
    e(f"s_cselect_b32 s{SA + 1}, s{P_WG + 1}, s{P_WU + 1}")
    e(f"s_cselect_b32 s7, 0, {UPOFF}")
    e(f"s_and_b32 s{SA + 1}, s{SA + 1}, 0xffff")
    e(f"s_mov_b32 s{SA + 2}, 1835008")
    e(f"s_mov_b32 s{SA + 3}, 0x00020000")
    e(f"s_and_b32 s6, s{sW}, 1")
    e("s_mul_i32 s6, s6, 7")
    e("s_mul_i32 s20, s4, 57344")
    e("s_mul_i32 s21, s5, 896")
    e("s_add_u32 s20, s20, s21")
    e("s_movk_i32 s22, 1171")
    e("s_movk_i32 s23, 3584")
    for i in range(7):
        e(f"s_add_u32 s24, s6, {i}")
        e("s_lshl_b32 s25, s24, 6")
        e("v_add_u32 v3, s25, v1")
        e("v_mul_lo_u32 v4, v3, s22")
        e("v_lshrrev_b32 v4, 16, v4")
        e("v_mul_u32_u24 v5, 56, v4")
        e("v_sub_u32 v5, v3, v5")
        e("v_mul_lo_u32 v4, v4, s23")
        e("v_lshl_add_u32 v4, v5, 4, v4")
        e("s_lshl_b32 s25, s24, 10")
        e("s_add_u32 m0, s25, s7")
        e(f"buffer_load_dwordx4 v4, {sr(SA, 4)}, s20 offen lds", tag='d')
    e("v_lshrrev_b32 v7, 4, v1")
    e("v_and_b32 v8, 1, v7")
    e("v_lshrrev_b32 v9, 1, v7")
    e("v_bfe_u32 v10, v1, 2, 2")
    e("v_lshl_add_u32 v10, v9, 3, v10")
    e("v_mul_u32_u24 v10, 896, v10")
    e(f"v_mul_u32_u24 v8, {UPOFF}, v8")
    e("v_add_u32 v10, v10, v8")
    e("v_and_b32 v11, 1, v1")
    e("v_bfe_u32 v12, v1, 1, 1")
    e("v_lshl_add_u32 v10, v11, 4, v10")
    e("v_lshl_add_u32 v10, v12, 3, v10")
    e(f"s_mul_i32 s24, s{sW}, 224")
    e("v_add_u32 v10, s24, v10")
    e("s_lshl_b32 s24, s5, 2")
    e(f"s_add_u32 s24, s24, s{sW}")
    e("s_mul_i32 s24, s24, 294912")
    e("s_lshl_b32 s25, s4, 10")
    e("s_add_u32 s24, s24, s25")
    e(f"s_add_u32 s24, s24, {WS_W1}")
    e("v_lshlrev_b32 v11, 4, v1")
    e("v_add_u32 v11, s24, v11")
    vm0(a)
    e("s_barrier")
    for T in range(7):
        for h in range(2):
            e(f"ds_read_b64_tr_b16 {vr(16 + 4 * T + 2 * h, 2)}, v10 offset:{4 * h * 896 + 32 * T}", tag=('t', T))
    for T in range(7):
        a.wait_lg(tag=('t', T))
        e(f"s_mov_b32 s25, {32768 * T}")
        e(f"buffer_store_dwordx4 {vr(16 + 4 * T, 4)}, v11, {sr(WSD, 4)}, s25 offen", tag='o')
    e("s_endpgm")
    a.label("K0_END")
    e("s_endpgm")
    return a


K1_SCAN = 98304
SC_PITCH = 272
K1_AGGL = K1_SCAN + 128 * SC_PITCH
K1_JOB = K1_AGGL + 2048
K1_LDS = K1_JOB + 16384


def gen_k1_full():
    a = Asm()
    e = a.emit
    WSD, DBG, PLRE, PLIM, PLDT, AGG = 8, 12, 16, 20, 24, 28
    sR, sC, sW = 40, 41, 42
    TORD = [0, 7, 8, 1, 2, 3, 4, 5, 6]
    e("s_cmp_ge_u32 s2, 256")
    e("s_cbranch_scc1 K1_END")
    load_kernargs(a)
    e("v_and_b32 v1, 63, v0")
    e("v_lshrrev_b32 v2, 6, v0")
    e(f"v_readfirstlane_b32 s{sW}, v2")
    MAP = os.environ.get('K1MAP', '4x8')
    e("s_lshr_b32 s3, s2, 3")
    if MAP == '4x8':
        e("s_bfe_u32 s4, s2, 0x20001")
        e("s_lshl_b32 s4, s4, 2")
        e("s_and_b32 s5, s3, 3")
        e(f"s_add_u32 s{sR}, s4, s5")
        e("s_and_b32 s4, s2, 1")
        e("s_lshl_b32 s4, s4, 3")
        e("s_lshr_b32 s5, s3, 2")
        e(f"s_add_u32 s{sC}, s4, s5")
    elif MAP == '8x4':
        e("s_bfe_u32 s4, s2, 0x10002")
        e("s_lshl_b32 s4, s4, 3")
        e("s_and_b32 s5, s3, 7")
        e(f"s_add_u32 s{sR}, s4, s5")
        e("s_and_b32 s4, s2, 3")
        e("s_lshl_b32 s4, s4, 2")
        e("s_lshr_b32 s5, s3, 3")
        e(f"s_add_u32 s{sC}, s4, s5")
    elif MAP == '2x16':
        e("s_and_b32 s4, s2, 7")
        e("s_lshl_b32 s4, s4, 1")
        e("s_and_b32 s5, s3, 1")
        e(f"s_add_u32 s{sR}, s4, s5")
        e(f"s_lshr_b32 s{sC}, s3, 1")
    e("v_lshlrev_b32 v6, 4, v1")
    e("v_and_b32 v3, 31, v1")
    e("v_lshrrev_b32 v4, 5, v1")
    lgk0(a)
    st = Stamper(a, 95, "k1")
    st.stamp("start")
    st.rt(30)
    srd(a, WSD, P_WS, WS_SIZE)
    e(f"s_cmp_ge_u32 s{sW}, 4")
    e("s_cbranch_scc1 K1_COMPUTE")
    e(f"s_mul_i32 s43, s{sC}, 294912")
    e(f"s_lshl_b32 s44, s{sW}, 13")
    e("s_add_u32 s43, s43, s44")
    e(f"s_add_u32 s43, s43, {WS_W1}")

    BRE, BIM, SX, SY = 32, 36, 48, 52
    srd(a, BRE, P_BRE, 524288)
    srd(a, BIM, P_BIM, 524288)
    e(f"s_lshl_b32 s4, s{sC}, 5")
    e(f"s_lshl_b32 s5, s{sW}, 3")
    e("s_add_u32 s4, s4, s5")
    e("s_lshl_b32 s47, s4, 10")
    e(f"s_lshl_b32 s5, s{sW}, 2")
    for k in range(4):
        e(f"s_add_u32 s6, s5, {k}")
        e("s_and_b32 s6, s6, 7")
        e(f"v_xor_b32 v{88 + k}, s6, v1")
        e(f"v_lshlrev_b32 v{88 + k}, 4, v{88 + k}")

    def dma_tile(idx):
        T = TORD[idx]
        slot = idx % 3 if idx < 8 else 3
        for i in range(8 if not (os.environ.get('K1EXP') == 'nodma' and idx >= 3) else 0):
            e(f"s_add_u32 m0, s44, {slot * 32768 + i * 1024}")
            if T >= 7:
                e(f"s_add_u32 s45, s47, {1024 * i}")
                e(f"buffer_load_dwordx4 v{88 + (i >> 1)}, {sr(BRE if T == 7 else BIM, 4)}, s45 offen lds", tag=('w', idx))
            else:
                e(f"s_add_u32 s45, s43, {T * 32768 + i * 1024}")
                e(f"buffer_load_dwordx4 v6, {sr(WSD, 4)}, s45 offen lds", tag=('w', idx))

    dma_tile(0)
    dma_tile(1)
    srd(a, DBG, P_DBG, 256)
    srd(a, PLRE, P_LRE, 1024)
    srd(a, PLIM, P_LIM, 1024)
    srd(a, PLDT, P_LDT, 1024)
    e(f"s_lshl_b32 s4, s{sC}, 5")
    e("v_add_u32 v7, s4, v3")
    e("v_lshlrev_b32 v7, 1, v7")
    e(f"buffer_load_ushort v24, v7, {sr(PLRE, 4)}, 0 offen", tag='par')
    e(f"buffer_load_ushort v25, v7, {sr(PLIM, 4)}, 0 offen", tag='par')
    e(f"buffer_load_ushort v26, v7, {sr(PLDT, 4)}, 0 offen", tag='par')
    e(f"s_lshl_b32 s3, s{sC}, 12")
    e(f"s_add_u32 s3, s3, {WS_AGG}")
    srd_off(a, AGG, P_WS, 3, 4096)
    RAW = 32
    GA = 64

    def bar(idx):
        if idx == 1:
            return
        a.wait_vm(tag=('w', idx))
        if idx == 0:
            a.wait_vm(tag=('w', 1))
        if idx == 7:
            a.wait_vm(tag=('w', 8))
        a.wait_lg(n=0)
        e("s_barrier")
        if idx == 0:
            dma_tile(2)
        elif idx == 2:
            dma_tile(3)
            dma_tile(4)
        elif idx == 5:
            dma_tile(7)
            dma_tile(8)
        elif idx + 2 < 8:
            dma_tile(idx + 2)

    bar(0)
    a.wait_vm(tag='par')
    for t in ("v_lshlrev_b32 v24, 16, v24", "v_lshlrev_b32 v25, 16, v25", "v_lshlrev_b32 v26, 16, v26",
              f"v_mul_f32 v26, {LOG2E:#x}, v26", "v_exp_f32 v26, v26", "v_cvt_pk_bf16_f32 v26, v26, v26",
              "v_lshlrev_b32 v26, 16, v26", "v_mul_f32 v8, v26, v24", "v_mul_f32 v9, v26, v25",
              f"v_mul_f32 v8, {LOG2E:#x}, v8", "v_exp_f32 v8, v8", f"v_mul_f32 v9, {INV2PI:#x}, v9",
              "v_fract_f32 v9, v9", "v_cos_f32 v10, v9", "v_sin_f32 v11, v9",
              "v_mul_f32 v10, v8, v10", "v_mul_f32 v11, v8, v11",
              "v_add_f32 v12, -1.0, v10", "v_mul_f32 v13, v24, v24", "v_fma_f32 v13, v25, v25, v13",
              "v_rcp_f32 v14, v13", "v_fma_f32 v15, -v13, v14, 1.0", "v_fma_f32 v14, v15, v14, v14",
              "v_add_f32 v14, v14, v14", "v_mul_f32 v15, v12, v24", "v_fma_f32 v15, v11, v25, v15",
              "v_mul_f32 v16, v11, v24", "v_fma_f32 v16, -v12, v25, v16",
              "v_mul_f32 v12, v15, v14", "v_mul_f32 v13, v16, v14"):
        e(t)

    def csq(dr, di, sr_, si_):
        for t in (f"v_mul_f32 v18, v{si_}, v{si_}", f"v_mul_f32 v19, v{sr_}, v{si_}",
                  f"v_fma_f32 v{dr}, v{sr_}, v{sr_}, -v18", f"v_add_f32 v{di}, v19, v19"):
            e(t)
    csq(14, 15, 10, 11)
    for _ in range(3):
        csq(14, 15, 14, 15)
    csq(16, 17, 14, 15)
    csq(16, 17, 16, 17)
    csq(16, 17, 16, 17)
    for t in (f"s_lshl_b32 s3, s{sW}, 1", "v_add_u32 v20, s3, v4",
              f"v_mul_u32_u24 v21, {16 * SC_PITCH}, v20", "v_lshl_add_u32 v21, v3, 2, v21",
              f"v_add_u32 v21, {K1_SCAN}, v21",
              "v_lshlrev_b32 v22, 8, v20", "v_lshl_add_u32 v22, v3, 3, v22", f"v_add_u32 v22, {K1_AGGL}, v22",
              "v_lshlrev_b32 v23, 3, v3", f"v_add_u32 v23, {K1_AGGL}, v23"):
        e(t)
    bar(1)
    bar(2)
    bar(3)
    bar(4)
    for i in range(16):
        e(f"ds_read_b32 v{RAW + i}, v21 offset:{i * SC_PITCH}", tag=('s', i))
        e(f"ds_read_b32 v{RAW + 16 + i}, v21 offset:{i * SC_PITCH + 128}", tag=('s', i))
    for i in range(1, 16):
        r, im, pr, pi = RAW + i, RAW + 16 + i, RAW + i - 1, RAW + 15 + i
        a.wait_lg(tag=('s', i))
        e(f"v_fma_f32 v{r}, v10, v{pr}, v{r}")
        e(f"v_fma_f32 v{im}, v10, v{pi}, v{im}")
        e(f"v_fma_f32 v{r}, -v11, v{pi}, v{r}")
        e(f"v_fma_f32 v{im}, v11, v{pr}, v{im}")
    e(f"v_mov_b32 v28, v{RAW + 15}")
    e(f"v_mov_b32 v29, v{RAW + 31}")
    e("ds_write_b64 v22, v[28:29]", tag='w')
    bar(5)
    for j in range(7):
        e(f"ds_read_b64 {vr(GA + 2 * j, 2)}, v23 offset:{256 * j}", tag=('g', j))
    for t in ("v_mov_b32 v24, 0", "v_mov_b32 v25, 0", "v_mov_b32 v26, 1.0", "v_mov_b32 v27, 0"):
        e(t)
    for j in range(7):
        gr, gi = GA + 2 * j, GA + 1 + 2 * j
        a.wait_lg(tag=('g', j))
        e(f"v_cmp_lt_u32 vcc, {j}, v20")
        for t in (f"v_fma_f32 v{gr}, v14, v24, v{gr}", f"v_fma_f32 v{gi}, v14, v25, v{gi}",
                  f"v_fma_f32 v{gr}, -v15, v25, v{gr}", f"v_fma_f32 v{gi}, v15, v24, v{gi}",
                  "v_mul_f32 v28, v14, v26", "v_mul_f32 v29, v14, v27",
                  "v_fma_f32 v28, -v15, v27, v28", "v_fma_f32 v29, v15, v26, v29",
                  f"v_cndmask_b32 v24, v24, v{gr}, vcc", f"v_cndmask_b32 v25, v25, v{gi}, vcc",
                  "v_cndmask_b32 v26, v26, v28, vcc", "v_cndmask_b32 v27, v27, v29, vcc"):
            e(t)
    for t in (f"v_fma_f32 v28, v14, v24, v{RAW + 15}", f"v_fma_f32 v29, v14, v25, v{RAW + 31}",
              "v_fma_f32 v28, -v15, v25, v28", "v_fma_f32 v29, v15, v24, v29",
              f"s_lshl_b32 s3, s{sR}, 8", "v_lshl_add_u32 v30, v3, 3, s3",
              f"s_lshl_b32 s4, s{sC}, 2", "v_mov_b32 v31, s4",
              f"s_lshl_b32 s5, 1, s{sR}", "v_mov_b32 v7, s5"):
        e(t)
    e("v_or_b32 v28, 1, v28")
    e(f"s_cmp_eq_u32 s{sW}, 3")
    e("s_cbranch_scc0 K1_NOPUB")
    e("s_mov_b32 exec_lo, 0", defs=[('exec', 0)], uses=[])
    e(f"buffer_store_dwordx2 v[28:29], v30, {sr(AGG, 4)}, 0 offen sc0 sc1", tag='pub')
    e("s_mov_b64 exec, -1", defs=[('exec', 0)], uses=[])
    a.label("K1_NOPUB")
    a.nop(2)
    a.vm = [t for t in a.vm if t != 'pub']
    bar(6)
    e("s_lshl_b32 s56, s2, 2")
    e(f"s_add_u32 s56, s56, s{sW}")
    e(f"s_lshl_b32 s57, s{sW}, 12")
    e(f"s_add_u32 s57, s57, {K1_JOB}")
    e("s_cmp_ge_u32 s56, 448")
    e("s_cbranch_scc1 K1_JOBC")
    srd(a, SX, P_WD, 1835008)
    e("s_lshr_b32 s4, s56, 3")
    e("s_and_b32 s5, s56, 7")
    e("s_lshl_b32 s6, s4, 15")
    e("s_lshl_b32 s7, s5, 7")
    e("s_add_u32 s6, s6, s7")
    e("v_lshrrev_b32 v28, 3, v1")
    e("v_lshlrev_b32 v28, 10, v28")
    e("v_and_b32 v29, 7, v1")
    e("v_lshl_add_u32 v28, v29, 4, v28")
    for i in range(4):
        e(f"s_add_u32 m0, s57, {1024 * i}")
        e(f"s_add_u32 s20, s6, {8192 * i}")
        e(f"buffer_load_dwordx4 v28, {sr(SX, 4)}, s20 offen lds", tag='job')
    e("s_mul_i32 s58, s5, 88")
    e("s_add_u32 s58, s58, s4")
    e("s_add_u32 s58, s58, 32")
    e("s_lshl_b32 s58, s58, 12")
    e(f"s_add_u32 s58, s58, {WS_W2}")
    e("s_branch K1_JOBISSUED")
    a.label("K1_JOBC")
    a.nop(2)
    e("s_cmp_ge_u32 s56, 960")
    e("s_cbranch_scc1 K1_JOBISSUED")
    e("s_sub_u32 s3, s56, 448")
    e("s_lshr_b32 s4, s3, 6")
    e("s_bfe_u32 s5, s3, 0x40002")
    e("s_bfe_u32 s6, s3, 0x10001")
    e("s_and_b32 s7, s3, 1")
    e("s_cmp_eq_u32 s6, 0")
    e(f"s_cselect_b32 s{SX}, s{P_CRE}, s{P_CIM}")
    e(f"s_cselect_b32 s{SX + 1}, s{P_CRE + 1}, s{P_CIM + 1}")
    e(f"s_and_b32 s{SX + 1}, s{SX + 1}, 0xffff")
    e(f"s_mov_b32 s{SX + 2}, 524288")
    e(f"s_mov_b32 s{SX + 3}, 0x00020000")
    e("s_lshl_b32 s20, s4, 6")
    e("s_lshl_b32 s21, s7, 5")
    e("s_add_u32 s20, s20, s21")
    e("v_and_b32 v28, 15, v1")
    e("v_add_u32 v28, s20, v28")
    e("v_lshlrev_b32 v28, 10, v28")
    e("v_lshrrev_b32 v29, 4, v1")
    e("v_lshl_add_u32 v28, v29, 4, v28")
    e("s_lshl_b32 s20, s5, 6")
    e("s_add_u32 s21, s20, 16384")
    e("s_mov_b32 m0, s57")
    e(f"buffer_load_dwordx4 v28, {sr(SX, 4)}, s20 offen lds", tag='job')
    e("s_add_u32 m0, s57, 1024")
    e(f"buffer_load_dwordx4 v28, {sr(SX, 4)}, s21 offen lds", tag='job')
    e("s_mul_i32 s58, s4, 88")
    e("s_lshl_b32 s21, s5, 1")
    e("s_add_u32 s58, s58, s21")
    e("s_add_u32 s58, s58, s6")
    e("s_lshl_b32 s58, s58, 12")
    e("s_lshl_b32 s21, s7, 11")
    e("s_add_u32 s58, s58, s21")
    e(f"s_add_u32 s58, s58, {WS_W2}")
    a.label("K1_JOBISSUED")
    a.nop(2)
    a.vm = [t for t in a.vm if t != 'job']
    for i in range(16):
        r, im = RAW + i, RAW + 16 + i
        for t in (f"v_mul_f32 v28, v12, v{r}", f"v_mul_f32 v29, v12, v{im}",
                  f"v_fma_f32 v28, -v13, v{im}, v28", f"v_fma_f32 v{im}, -v13, v{r}, -v29", f"v_mov_b32 v{r}, v28"):
            e(t)
    bar(7)
    st.stamp("L bar7")
    e("v_lshlrev_b32 v30, 3, v3")
    for t in (f"s_lshl_b32 s3, s{sR}, 1", "s_mul_i32 s3, s3, 88", f"s_lshl_b32 s4, s{sC}, 1", "s_add_u32 s3, s3, s4",
              "s_lshl_b32 s3, s3, 12", f"s_add_u32 s3, s3, {WS_AF}",
              "v_lshrrev_b32 v2, 2, v20", "v_mul_u32_u24 v2, 88, v2", "v_and_b32 v31, 1, v3",
              "v_add_u32 v2, v2, v31", "v_lshlrev_b32 v2, 12, v2", "v_add_u32 v2, s3, v2",
              "v_and_b32 v7, 3, v20", "v_lshl_add_u32 v2, v7, 10, v2",
              "v_lshrrev_b32 v7, 3, v3", "v_lshl_add_u32 v2, v7, 8, v2",
              "v_and_b32 v7, 6, v3", "v_lshl_add_u32 v2, v7, 1, v2",
              "v_cmp_eq_u32 vcc, 1, v31", "v_mov_b32 v28, 0", "v_mov_b32 v29, 0"):
        e(t)
    a.label("K1_POLL")
    a.nop(2)
    for i in range(15):
        e(f"buffer_load_dwordx2 {vr(GA + 2 * i, 2)}, v30, {sr(AGG, 4)}, 0 offen offset:{256 * i} sc0 sc1", tag=('c', i))
    e("v_mov_b32 v7, 1")
    vm0(a)
    for i in range(15):
        e(f"s_cmp_le_u32 s{sR}, {i}")
        e("s_cbranch_scc1 K1_CHKDONE")
        e(f"v_and_b32 v7, v7, v{GA + 2 * i}")
    a.label("K1_CHKDONE")
    a.nop(2)
    e("v_cmp_eq_u32 s[6:7], 1, v7")
    e("s_cmp_eq_u64 s[6:7], -1")
    e("s_cbranch_scc1 K1_POLLDONE")
    e("s_sleep 2")
    e("s_branch K1_POLL")
    a.label("K1_POLLDONE")
    a.nop(2)
    st.stamp("L polled")
    for i in range(15):
        e(f"s_cmp_le_u32 s{sR}, {i}")
        e("s_cbranch_scc1 K1_CARRYDONE")
        gr, gi = GA + 2 * i, GA + 1 + 2 * i
        e(f"v_fma_f32 v{gr}, v16, v28, v{gr}")
        e(f"v_fma_f32 v{gi}, v16, v29, v{gi}")
        e(f"v_fma_f32 v{gr}, -v17, v29, v{gr}")
        e(f"v_fma_f32 v{gi}, v17, v28, v{gi}")
        e(f"v_mov_b32 v28, v{gr}")
        e(f"v_mov_b32 v29, v{gi}")
    a.label("K1_CARRYDONE")
    a.nop(2)
    for t in ("v_fma_f32 v24, v26, v28, v24", "v_fma_f32 v25, v26, v29, v25",
              "v_fma_f32 v24, -v27, v29, v24", "v_fma_f32 v25, v27, v28, v25",
              "v_mul_f32 v26, v12, v24", "v_mul_f32 v27, v12, v25",
              "v_fma_f32 v26, -v13, v25, v26", "v_fma_f32 v27, v13, v24, v27"):
        e(t)
    vm0(a)
    e("s_cmp_ge_u32 s56, 448")
    e("s_cbranch_scc1 K1_JOBC2")
    e("v_lshrrev_b32 v28, 4, v1")
    e("v_bfe_u32 v29, v1, 2, 2")
    e("v_lshl_add_u32 v28, v28, 3, v29")
    e("v_lshlrev_b32 v28, 7, v28")
    e("v_and_b32 v29, 3, v1")
    e("v_lshl_add_u32 v28, v29, 3, v28")
    e("v_add_u32 v28, s57, v28")
    for mt in range(4):
        for h in range(2):
            e(f"ds_read_b64_tr_b16 {vr(GA + 4 * mt + 2 * h, 2)}, v28 offset:{512 * h + 32 * mt}", tag=('jt', mt))
    for mt in range(4):
        a.wait_lg(tag=('jt', mt))
        e(f"buffer_store_dwordx4 {vr(GA + 4 * mt, 4)}, v6, {sr(WSD, 4)}, s58 offen offset:{1024 * mt}", tag='jo')
    e("s_branch K1_JOBDONE")
    a.label("K1_JOBC2")
    a.nop(2)
    e("s_cmp_ge_u32 s56, 960")
    e("s_cbranch_scc1 K1_JOBDONE")
    e("v_add_u32 v28, s57, v6")
    e(f"ds_read_b128 {vr(GA, 4)}, v28", tag='jt')
    e(f"ds_read_b128 {vr(GA + 4, 4)}, v28 offset:1024", tag='jt')
    a.wait_lg(n=0)
    e(f"buffer_store_dwordx4 {vr(GA, 4)}, v6, {sr(WSD, 4)}, s58 offen", tag='jo')
    e(f"buffer_store_dwordx4 {vr(GA + 4, 4)}, v6, {sr(WSD, 4)}, s58 offen offset:1024", tag='jo')
    a.label("K1_JOBDONE")
    a.nop(2)
    for i in range(16):
        r, im = RAW + i, RAW + 16 + i
        fr, fi, nr, ni = (26, 27, 24, 25) if i % 2 == 0 else (24, 25, 26, 27)
        for t in (f"v_mul_f32 v{nr}, v10, v{fr}", f"v_mul_f32 v{ni}, v10, v{fi}",
                  f"v_fma_f32 v{nr}, -v11, v{fi}, v{nr}", f"v_fma_f32 v{ni}, v11, v{fr}, v{ni}",
                  f"v_add_f32 v{r}, v{r}, v{nr}", f"v_sub_f32 v{im}, v{im}, v{ni}",
                  f"v_cndmask_b32 v28, v{im}, v{r}, vcc",
                  "v_mov_b32_dpp v29, v28 quad_perm:[1,0,3,2] row_mask:0xf bank_mask:0xf",
                  f"v_cndmask_b32 v28, v{r}, v29, vcc", f"v_cndmask_b32 v29, v29, v{im}, vcc",
                  f"v_cvt_pk_bf16_f32 v{r}, v28, v29"):
            e(t)
        e(f"buffer_store_dword v{r}, v2, {sr(WSD, 4)}, 0 offen offset:{16 * i}", tag='hs')
    st.stamp("L end")
    st.dump(WSD, WS_STAMP, 2, shift=11)
    e("s_endpgm")

    a.label("K1_COMPUTE")
    a.nop(4)
    a.vm = []
    a.lg = []
    st.n = 1
    if int(os.environ.get('K1PRIO', '0')):
        e(f"s_setprio {int(os.environ.get('K1PRIO'))}")
    e(f"s_sub_u32 s{sW}, s{sW}, 4")
    e(f"s_lshl_b32 s3, s{sR}, 2")
    e(f"s_add_u32 s3, s3, s{sW}")
    e("s_lshl_b32 s3, s3, 15")
    if WS_XF:
        e(f"s_add_u32 s3, s3, {WS_XF}")
    for s in range(32):
        if s % 4 == 0:
            e(f"s_add_u32 s4, s3, {1024 * s}")
        e(f"buffer_load_dwordx4 {ar(32 + 4 * s, 4)}, v6, {sr(WSD, 4)}, s4 offen offset:{1024 * (s % 4)}", tag=('x', s))
    e(f"v_add_u32 v5, 0x10000, v6")
    for t in (f"s_lshl_b32 s3, s{sW}, 5", "v_add_u32 v7, s3, v3", f"v_mul_u32_u24 v7, {SC_PITCH}, v7",
              "v_lshl_add_u32 v7, v4, 4, v7", f"v_add_u32 v7, {K1_SCAN}, v7",
              f"s_lshl_b32 s3, s{sR}, 1", f"s_lshr_b32 s4, s{sW}, 1", "s_add_u32 s3, s3, s4",
              "s_mul_i32 s3, s3, 88", "s_add_u32 s3, s3, 32", "s_lshl_b32 s3, s3, 12",
              f"s_and_b32 s4, s{sW}, 1", "s_lshl_b32 s4, s4, 11", "s_add_u32 s3, s3, s4",
              f"s_add_u32 s3, s3, {WS_AF}",
              "v_lshrrev_b32 v2, 4, v3", "v_lshlrev_b32 v2, 10, v2", "v_and_b32 v8, 15, v3",
              "v_lshl_add_u32 v2, v8, 4, v2", "v_add_u32 v2, s3, v2",
              f"s_mul_i32 s46, s{sC}, 14", "v_add_u32 v8, s46, v4"):
        e(t)
    e("v_bfe_u32 v9, v3, 1, 3")
    e("v_lshlrev_b32 v10, 10, v3")
    for k in range(4):
        e(f"v_add_u32 v11, {2 * k}, v4")
        e("v_xor_b32 v11, v11, v9")
        e("v_lshl_add_u32 v11, v11, 4, v10")
        e(f"v_add_u32 v{84 + k}, {32768 * (TORD.index(7) % 3)}, v11")
        e(f"v_add_u32 v{88 + k}, {32768 * (TORD.index(8) % 3)}, v11")
    ACC = [32, 48]
    D = int(os.environ.get('K1D', '5'))
    RING = 8

    def ops_dump(acc, part):
        return [(lambda j=j: e(f"ds_write_b128 v7, {vr(acc + 4 * j, 4)} offset:{part * 128 + j * 32}", tag='w')) for j in range(4)]

    def ops_glu(acc, T):
        g, u = acc, acc + 8
        o = 64 + 4 * (T & 1)
        t0 = 72
        L = []
        w = L.append
        for p in range(4):
            w(lambda p=p: e(f"v_cvt_pk_bf16_f32 v{t0 + p}, v{g + 2 * p}, v{g + 2 * p + 1}"))
            w(lambda p=p: e(f"v_cvt_pk_bf16_f32 v{t0 + 4 + p}, v{u + 2 * p}, v{u + 2 * p + 1}"))
        for p in range(4):
            w(lambda p=p: e(f"v_lshlrev_b32 v{g + 2 * p}, 16, v{t0 + p}"))
            w(lambda p=p: e(f"v_and_b32 v{g + 2 * p + 1}, 0xffff0000, v{t0 + p}"))
        for i in range(8):
            w(lambda i=i: e(f"v_mul_f32 v{g + i}, {NLOG2E:#x}, v{g + i}"))
        for i in range(8):
            w(lambda i=i: e(f"v_exp_f32 v{g + i}, v{g + i}"))
            p = i // 2
            if i % 2 == 0:
                w(lambda p=p: e(f"v_lshlrev_b32 v{u + 2 * p}, 16, v{t0 + 4 + p}"))
            else:
                w(lambda p=p: e(f"v_and_b32 v{u + 2 * p + 1}, 0xffff0000, v{t0 + 4 + p}"))
        for i in range(8):
            w(lambda i=i: e(f"v_add_f32 v{g + i}, 1.0, v{g + i}"))
        for i in range(8):
            w(lambda i=i: e(f"v_rcp_f32 v{g + i}, v{g + i}"))
        w(lambda: e(f"v_add_u32 v80, {2 * T}, v8"))
        w(lambda: e("v_lshrrev_b32 v81, 2, v80"))
        w(lambda: e("v_and_b32 v80, 3, v80"))
        w(lambda: e("v_lshl_add_u32 v81, v81, 12, v2"))
        w(lambda: e(f"v_lshl_add_u32 v{82 + (T & 1)}, v80, 8, v81"))
        for p in range(4):
            w(lambda p=p: e(f"v_cvt_pk_bf16_f32 v{t0 + p}, v{g + 2 * p}, v{g + 2 * p + 1}"))
        for p in range(4):
            w(lambda p=p: e(f"v_lshlrev_b32 v{g + 2 * p}, 16, v{t0 + p}"))
            w(lambda p=p: e(f"v_and_b32 v{g + 2 * p + 1}, 0xffff0000, v{t0 + p}"))
        for i in range(8):
            w(lambda i=i: e(f"v_mul_f32 v{g + i}, v{g + i}, v{u + i}"))
        for p in range(4):
            w(lambda p=p: e(f"v_cvt_pk_bf16_f32 v{o + p}, v{g + 2 * p}, v{g + 2 * p + 1}"))
        SF = os.environ.get('K1ST', '')
        if SF != 'none':
            w(lambda: e(f"buffer_store_dwordx4 {vr(o, 4)}, v{82 + (T & 1)}, {sr(WSD, 4)}, 0 offen {SF}", tag='hg'))
        return L

    def frag(n):
        return ar(4 * (n % RING), 4)

    SEQ = []
    for s in range(32):
        SEQ += [(0, s), (1, s)]
    for idx in range(2, 9):
        SEQ += [(idx, s) for s in range(32)]
    NF = len(SEQ)
    ACC3 = {0: 32, 1: 48}
    for idx in range(2, 9):
        ACC3[idx] = 16 if idx == 2 else (32 if idx % 2 == 1 else 48)

    def issue_read(n):
        idx, s = SEQ[n]
        slot = idx % 3
        if s == 0 and idx != 1:
            if idx < 8:
                e("s_barrier")
            st.stamp(f"barrier {idx}")
        base = 5 if slot == 2 else 6
        off = (slot & 1) * 32768 + s * 1024 if slot < 2 else s * 1024
        if idx == 8:
            base, off = 5, 32768 + s * 1024
        if TORD[idx] >= 7:
            base = (84 if TORD[idx] == 7 else 88) + (s & 3)
            off = (s >> 2) * 128
        e(f"ds_read_b128 {frag(n)}, v{base} offset:{off}", tag=('f', n))

    for n in range(D):
        issue_read(n)
    pend = []
    for n in range(NF):
        idx, s = SEQ[n]
        acc = ACC3[idx]
        if s == 0 and idx >= 2:
            assert not pend
            prevs = [0, 1] if idx == 2 else [idx - 1]
            for p in prevs[::-1]:
                pT = TORD[p]
                pend += ops_dump(ACC3[p], pT - 7) if pT >= 7 else ops_glu(ACC3[p], pT)
        if idx == 0:
            a.wait_vm(tag=('x', s))
        a.wait_lg(tag=('f', n))
        c = "0" if s == 0 else vr(acc, 16)
        e(f"v_mfma_f32_32x32x16_bf16 {vr(acc, 16)}, {frag(n)}, {ar(32 + 4 * s, 4)}, {c}")
        if s >= 2 and idx >= 2:
            rem = max(1, (32 - D) - s)
            k = (len(pend) + rem - 1) // rem if pend else 0
            for _ in range(k):
                if pend:
                    pend.pop(0)()
        if n + D < NF:
            if SEQ[n + D][1] == 0 and SEQ[n + D][0] >= 2:
                assert not pend
                a.wait_lg(tag='w')
            issue_read(n + D)
    st.stamp("main end")
    for op in ops_glu(ACC3[8], TORD[8]):
        op()
    st.stamp("end")
    st.rt(31)
    st.dump(WSD, WS_STAMP, 2, shift=11)
    a.label("K1_END")
    e("s_endpgm")
    return a


K2_LDS = 131072
ROT = int(os.environ.get('K2ROT', '1'))
K2_START = [0, 11, 22, 32, 44, 55, 66, 77]
K2_CNT = [11, 11, 10, 12, 11, 11, 11, 11]


def gen_k2():
    a = Asm()
    e = a.emit
    WSD, XS, DSK, OUT = 8, 24, 28, 32
    sRB, sCB, sW = 40, 41, 42
    e("s_cmp_ge_u32 s2, 256")
    e("s_cbranch_scc1 K2_END")
    load_kernargs(a)
    e("v_and_b32 v1, 63, v0")
    e("v_lshrrev_b32 v2, 6, v0")
    e(f"v_readfirstlane_b32 s{sW}, v2")
    e("s_and_b32 s3, s2, 7")
    e("s_lshr_b32 s4, s2, 3")
    e(f"s_and_b32 s{sCB}, s4, 7")
    e("s_lshr_b32 s4, s4, 3")
    e("s_lshl_b32 s3, s3, 2")
    e(f"s_add_u32 s{sRB}, s3, s4")
    e("v_lshlrev_b32 v6, 4, v1")
    e(f"s_mul_i32 s44, s{sRB}, {88 * 4096}")
    e(f"s_add_u32 s44, s44, {WS_AF}")
    e(f"s_mul_i32 s45, s{sCB}, {88 * 4096}")
    e(f"s_add_u32 s45, s45, {WS_W2}")
    e(f"s_lshl_b32 s3, s{sW}, 15")
    e("s_add_u32 s46, s44, s3")
    e("s_add_u32 s47, s45, s3")
    e(f"s_mul_i32 s3, s{sW}, {14 * 4096}")
    e(f"s_add_u32 s3, s3, {32 * 4096}")
    e("s_add_u32 s48, s44, s3")
    e("s_add_u32 s49, s45, s3")
    lgk0(a)
    st = Stamper(a, 31, "k2")
    st.stamp("start")
    st.rt(30)
    srd(a, WSD, P_WS, WS_SIZE)
    NBUF = int(os.environ.get("K2NB", "11"))
    NSTEP = 22

    def buf(n, off):
        b = n % NBUF
        return vr(32 + 32 * b + off, 4) if b < 7 else ar(128 + 32 * (b - 7) + off, 4)

    def issue_loads(n):
        sa, sw, j = (46, 47, n) if n < 8 else (48, 49, n - 8)
        e(f"s_add_u32 s7, s{sw}, {4096 * j}")
        e(f"s_add_u32 s20, s{sa}, {4096 * j}")
        for t in range(4):
            e(f"buffer_load_dwordx4 {buf(n, 4 * t)}, v6, {sr(WSD, 4)}, s7 offen offset:{1024 * t}", tag=('l', n))
            e(f"buffer_load_dwordx4 {buf(n, 16 + 4 * t)}, v6, {sr(WSD, 4)}, s20 offen offset:{1024 * t}", tag=('l', n))

    PF = min(NBUF - 1, 7)
    for n in range(PF):
        issue_loads(n)
    srd(a, XS, P_X, 2097152)
    srd(a, DSK, P_DSK, 1024)
    srd(a, OUT, P_OUT, 4194304)
    nxt = PF
    for n in range(NSTEP):
        while nxt < NSTEP and nxt <= n + NBUF - 1 and len(a.vm) + 8 <= 63:
            issue_loads(nxt)
            nxt += 1
        a.wait_vm(tag=('l', n))
        if n % 2 == 0:
            st.stamp(f"step {n}")
        accb = 0 if n < 8 else 64
        for nt in range(4):
            for mt in range(4):
                d = accb + 16 * nt + 4 * mt
                c = "0" if n in (0, 8) else ar(d, 4)
                e(f"v_mfma_f32_16x16x32_bf16 {ar(d, 4)}, {buf(n, 4 * mt)}, {buf(n, 16 + 4 * nt)}, {c}")
    st.stamp("main end")
    e(f"s_lshl_b32 s3, s{sW}, 13")
    e("v_add_u32 v9, s3, v6")
    e("v_add_u32 v10, 0x10000, v9")
    for nt in range(4):
        for k in range(8):
            src = (0 if k < 4 else 64) + 16 * nt + 4 * (k & 3)
            e(f"ds_write_b128 v{9 + (nt >> 1)}, {ar(src, 4)} offset:{(nt & 1) * 32768 + k * 1024}", tag='w')
    e("v_and_b32 v3, 15, v1")
    e("v_lshrrev_b32 v4, 4, v1")
    e(f"s_lshl_b32 s3, s{sRB}, 6")
    e(f"s_lshl_b32 s4, s{sW}, 4")
    e("s_add_u32 s3, s3, s4")
    e("v_add_u32 v8, s3, v3")
    e(f"s_lshl_b32 s4, s{sCB}, 6")
    e("v_lshl_add_u32 v14, v4, 2, s4")
    e("v_lshlrev_b32 v11, 10, v8")
    e("v_lshl_add_u32 v11, v14, 1, v11")
    e("v_lshlrev_b32 v12, 1, v14")
    e("v_lshlrev_b32 v13, 3, v8")
    e(f"v_add_u32 v13, {WS_STATS}, v13")
    for mt in range(4):
        e(f"buffer_load_dwordx2 {vr(32 + 2 * mt, 2)}, v11, {sr(XS, 4)}, 0 offen offset:{32 * mt}", tag='e')
        e(f"buffer_load_dwordx2 {vr(40 + 2 * mt, 2)}, v12, {sr(DSK, 4)}, 0 offen offset:{32 * mt}", tag='e')
    e(f"buffer_load_dwordx2 v[48:49], v13, {sr(WSD, 4)}, 0 offen", tag='e')
    e(f"s_lshl_b32 s3, s{sW}, 15")
    e("v_add_u32 v9, s3, v6")
    a.wait_lg(n=0)
    e("s_barrier")
    for s in range(4):
        for k in range(8):
            e(f"ds_read_b128 {vr(128 + 32 * s + 4 * k, 4)}, v9 offset:{s * 8192 + k * 1024}", tag=('r', s, k))
    for k in range(8):
        a.wait_lg(tag=('r', 1, k))
        for i in range(4):
            e(f"v_add_f32 v{128 + 4 * k + i}, v{128 + 4 * k + i}, v{160 + 4 * k + i}")
    for k in range(8):
        a.wait_lg(tag=('r', 3, k))
        for i in range(4):
            e(f"v_add_f32 v{192 + 4 * k + i}, v{192 + 4 * k + i}, v{224 + 4 * k + i}")
    for k in range(8):
        for i in range(4):
            e(f"v_add_f32 v{128 + 4 * k + i}, v{128 + 4 * k + i}, v{192 + 4 * k + i}")
    st.stamp("reduced")
    a.wait_vm(tag='e')
    e("v_lshlrev_b32 v11, 1, v11")
    for m in range(4):
        for p in range(2):
            xr = 32 + 2 * m + p
            dr = 40 + 2 * m + p
            y0, y1 = 128 + 4 * m + 2 * p, 129 + 4 * m + 2 * p
            d0, d1 = 144 + 4 * m + 2 * p, 145 + 4 * m + 2 * p
            for t in (f"v_lshlrev_b32 v50, 16, v{xr}", f"v_and_b32 v51, 0xffff0000, v{xr}",
                      "v_sub_f32 v52, v50, v48", "v_sub_f32 v53, v51, v48", "v_cvt_pk_bf16_f32 v54, v52, v53",
                      "v_lshlrev_b32 v52, 16, v54", "v_and_b32 v53, 0xffff0000, v54",
                      "v_mul_f32 v52, v52, v49", "v_mul_f32 v53, v53, v49", "v_cvt_pk_bf16_f32 v54, v52, v53",
                      "v_lshlrev_b32 v52, 16, v54", "v_and_b32 v53, 0xffff0000, v54",
                      f"v_lshlrev_b32 v55, 16, v{dr}", f"v_and_b32 v56, 0xffff0000, v{dr}",
                      "v_mul_f32 v52, v52, v55", "v_mul_f32 v53, v53, v56", "v_cvt_pk_bf16_f32 v54, v52, v53",
                      "v_lshlrev_b32 v52, 16, v54", "v_and_b32 v53, 0xffff0000, v54",
                      f"v_add_f32 v{y0}, v{y0}, v52", f"v_add_f32 v{y1}, v{y1}, v53",
                      f"v_cvt_pk_bf16_f32 v54, v{d0}, v{d1}",
                      "v_lshlrev_b32 v52, 16, v54", "v_and_b32 v53, 0xffff0000, v54",
                      f"v_mul_f32 v55, {NLOG2E:#x}, v52", f"v_mul_f32 v56, {NLOG2E:#x}, v53",
                      "v_exp_f32 v55, v55", "v_exp_f32 v56, v56", "v_add_f32 v55, 1.0, v55", "v_add_f32 v56, 1.0, v56",
                      "v_rcp_f32 v55, v55", "v_rcp_f32 v56, v56", "v_mul_f32 v55, v52, v55", "v_mul_f32 v56, v53, v56",
                      "v_cvt_pk_bf16_f32 v54, v55, v56", "v_lshlrev_b32 v52, 16, v54", "v_and_b32 v53, 0xffff0000, v54",
                      f"v_mul_f32 v{y0}, v{y0}, v52", f"v_mul_f32 v{y1}, v{y1}, v53",
                      f"v_add_f32 v{y0}, v50, v{y0}", f"v_add_f32 v{y1}, v51, v{y1}"):
                e(t)
        e(f"buffer_store_dwordx4 {vr(128 + 4 * m, 4)}, v11, {sr(OUT, 4)}, 0 offen offset:{64 * m}", tag='o')
    st.stamp("end")
    st.rt(31)
    st.dump(WSD, WS_STAMP + 0x100000, 2, shift=11)
    a.label("K2_END")
    e("s_endpgm")
    return a


def kd(name, nfv, acc):
    return f""".p2align 6
.amdhsa_kernel {name}
  .amdhsa_next_free_vgpr {nfv}
  .amdhsa_next_free_sgpr 102
  .amdhsa_accum_offset {acc}
  .amdhsa_group_segment_fixed_size 0
  .amdhsa_kernarg_size 128
  .amdhsa_user_sgpr_count 2
  .amdhsa_user_sgpr_kernarg_segment_ptr 1
  .amdhsa_system_sgpr_workgroup_id_x 1
  .amdhsa_float_denorm_mode_32 3
  .amdhsa_float_denorm_mode_16_64 3
.end_amdhsa_kernel
"""


def main():
    k0 = gen_k0()
    k1 = gen_k1_full()
    k2 = gen_k2()
    out = []
    out.append(f"; @launch kernel=ssm_k0_kernel grid=({K0_GRID},1,1) block=(256,1,1) lds={K0_LDS}")
    out.append(f"; @launch kernel=ssm_k1_kernel grid=(256,1,1) block=(512,1,1) lds={K1_LDS}")
    out.append(f"; @launch kernel=ssm_k2_kernel grid=(256,1,1) block=(256,1,1) lds={K2_LDS}")
    out.append('.amdgcn_target "amdgcn-amd-amdhsa--gfx950"')
    out.append(".text")
    for nm, k in (("ssm_k0_kernel", k0), ("ssm_k1_kernel", k1), ("ssm_k2_kernel", k2)):
        out.append(f".globl {nm}")
        out.append(".p2align 8")
        out.append(f".type {nm},@function")
        out.append(f"{nm}:")
        out.append(k.text())
    out.append('.section .rodata,"a"')
    out.append(kd("ssm_k0_kernel", 72, 72))
    out.append(kd("ssm_k1_kernel", 256, 96))
    out.append(kd("ssm_k2_kernel", 512, 256))
    txt = "\n".join(out)
    path = sys.argv[1] if len(sys.argv) > 1 else f"cdna_kernels/{NAME}.s"
    open(path, "w").write(txt)
    for nm, k in (("k0", k0), ("k1", k1), ("k2", k2)):
        print(nm, "lines", len(k.lines), "nops", k.nops)


if __name__ == "__main__":
    main()
```

```python
import sys, os
from asmlib import *

NAME = "recurrent_scan__ssm_conv_s5__glu_gated_glu__prompt"
WS_XF = 0x000000
WS_W1 = 0x200000
WS_W2 = 0x700000
WS_AF = 0xA00000
WS_STATS = 0x1500000
WS_AGG = 0x1510000
WS_STAMP = 0x1600000
WS_SIZE = 0x2000000

LOG2E = 0x3FB8AA3B
NLOG2E = 0xBFB8AA3B
INV2PI = 0x3E22F983

STAMP = int(os.environ.get('KSTAMP', '0'))
K0ST = os.environ.get('K0ST', '')

P_X, P_LRE, P_LIM, P_BRE, P_BIM, P_CRE, P_CIM, P_LDT = 64, 66, 68, 70, 72, 74, 76, 78
P_DSK, P_BX, P_WG, P_WU, P_WD, P_OUT, P_DBG, P_WS = 80, 82, 84, 86, 88, 90, 92, 94


class Stamper:
    def __init__(self, a, vreg, name):
        self.a = a; self.v = vreg; self.n = 0; self.name = name

    def stamp(self, name):
        if not STAMP:
            return
        a = self.a
        a.raw("s_memtime s[100:101]")
        a.raw("s_waitcnt lgkmcnt(0)")
        a.pos += 2
        a.lg = []
        a.emit(f"v_writelane_b32 v{self.v}, s100, {self.n}", defs=[('v', self.v)], uses=[])
        print("stamp", self.name, self.n, name)
        self.n += 1

    def rt(self, slot):
        if not STAMP:
            return
        a = self.a
        a.raw("s_memrealtime s[100:101]")
        a.raw("s_waitcnt lgkmcnt(0)")
        a.pos += 2
        a.lg = []
        a.emit(f"v_writelane_b32 v{self.v}, s100, {slot}", defs=[('v', self.v)], uses=[])

    def dump(self, wsd, base, tmp, shift=10):
        if not STAMP:
            return
        a = self.a
        a.emit(f"v_lshlrev_b32 v{tmp}, 2, v0")
        a.emit(f"s_lshl_b32 s100, s2, {shift}")
        a.emit(f"s_add_u32 s100, s100, {base}")
        a.emit(f"v_add_u32 v{tmp}, s100, v{tmp}")
        a.emit(f"buffer_store_dword v{self.v}, v{tmp}, {sr(wsd, 4)}, 0 offen", tag='stamp')


def srd(a, d, base, size):
    a.emit(f"s_mov_b32 s{d}, s{base}")
    a.emit(f"s_and_b32 s{d + 1}, s{base + 1}, 0xffff")
    a.emit(f"s_mov_b32 s{d + 2}, {size}")
    a.emit(f"s_mov_b32 s{d + 3}, 0x00020000")


def srd_off(a, d, base, soff, size):
    a.emit(f"s_add_u32 s{d}, s{base}, s{soff}")
    a.emit(f"s_addc_u32 s{d + 1}, s{base + 1}, 0")
    a.emit(f"s_and_b32 s{d + 1}, s{d + 1}, 0xffff")
    a.emit(f"s_mov_b32 s{d + 2}, {size}")
    a.emit(f"s_mov_b32 s{d + 3}, 0x00020000")


def load_kernargs(a):
    a.raw("s_load_dwordx16 s[64:79], s[0:1], 0")
    a.raw("s_load_dwordx16 s[80:95], s[0:1], 64")
    a.pos += 2


def lgk0(a):
    a.raw("s_waitcnt lgkmcnt(0)")
    a.pos += 1
    a.lg = []


def vm0(a):
    a.raw("s_waitcnt vmcnt(0)")
    a.pos += 1
    a.vm = []


K0_LDS = 32768
K0_GRID = 256 + 64 * int(os.environ.get("K0WARM", "1"))


def gen_k0():
    a = Asm()
    e = a.emit
    WSD, SA, SB = 8, 12, 16
    sW = 42
    e(f"s_cmp_ge_u32 s2, {K0_GRID}")
    e("s_cbranch_scc1 K0_END")
    load_kernargs(a)
    e("v_and_b32 v1, 63, v0")
    e("v_lshrrev_b32 v2, 6, v0")
    e(f"v_readfirstlane_b32 s{sW}, v2")
    lgk0(a)
    srd(a, WSD, P_WS, WS_SIZE)
    e("s_cmp_ge_u32 s2, 256")
    e("s_cbranch_scc1 K0_NOZERO")
    e(f"s_cmp_eq_u32 s{sW}, 0")
    e("s_cbranch_scc0 K0_NOZERO")
    e("s_lshl_b32 s3, s2, 8")
    e(f"s_add_u32 s3, s3, {WS_AGG}")
    e("v_lshlrev_b32 v3, 2, v1")
    e("v_mov_b32 v4, 0")
    e(f"buffer_store_dword v4, v3, {sr(WSD, 4)}, s3 offen", tag='z')
    e("s_cmp_ge_u32 s2, 32")
    e("s_cbranch_scc1 K0_NOZERO")
    e("s_add_u32 s3, s3, 0x10000")
    e(f"buffer_store_dword v4, v3, {sr(WSD, 4)}, s3 offen", tag='z')
    a.label("K0_NOZERO")
    a.nop(2)
    a.vm = []
    e("s_cmp_ge_u32 s2, 128")
    e("s_cbranch_scc1 K0_NOTLN")
    JOBS = int(os.environ.get('K0JOBS', '31'))
    if not JOBS & 1:
        e("s_endpgm")
    srd(a, SA, P_X, 2097152)
    e("s_lshl_b32 s3, s2, 4")
    e(f"s_lshl_b32 s4, s{sW}, 2")
    e("s_add_u32 s3, s3, s4")
    e("s_lshl_b32 s4, s3, 10")
    e("v_lshlrev_b32 v3, 4, v1")
    e("v_add_u32 v3, s4, v3")
    for i in range(4):
        e(f"buffer_load_dwordx4 {vr(16 + 4 * i, 4)}, v3, {sr(SA, 4)}, 0 offen offset:{1024 * i}", tag=('x', i))
    e("v_mov_b32 v4, 0x3f803f80")
    e("v_mov_b32 v5, 0x00003f80")
    e("v_mov_b32 v6, 0x3f800000")
    e("s_lshr_b32 s5, s3, 5")
    e("s_lshl_b32 s5, s5, 15")
    e("s_and_b32 s6, s3, 31")
    e("s_lshl_b32 s6, s6, 4")
    e("s_add_u32 s5, s5, s6")
    e("v_lshrrev_b32 v7, 1, v1")
    e("v_lshlrev_b32 v7, 10, v7")
    e("v_and_b32 v8, 1, v1")
    e("v_lshl_add_u32 v7, v8, 9, v7")
    e("v_add_u32 v7, s5, v7")
    if WS_XF:
        e(f"v_add_u32 v7, {WS_XF}, v7")
    for i in range(4):
        a.wait_vm(tag=('x', i))
        e(f"v_dot2_f32_bf16 v{32 + 2 * i}, v{16 + 4 * i}, v4, 0")
        e(f"v_dot2_f32_bf16 v{33 + 2 * i}, v{16 + 4 * i}, v{16 + 4 * i}, 0")
        for j in range(1, 4):
            e(f"v_dot2_f32_bf16 v{32 + 2 * i}, v{16 + 4 * i + j}, v4, v{32 + 2 * i}")
            e(f"v_dot2_f32_bf16 v{33 + 2 * i}, v{16 + 4 * i + j}, v{16 + 4 * i + j}, v{33 + 2 * i}")
    for pat in ("quad_perm:[1,0,3,2]", "quad_perm:[2,3,0,1]", "row_half_mirror", "row_mirror"):
        for k in range(8):
            e(f"v_add_f32_dpp v{32 + k}, v{32 + k}, v{32 + k} {pat} row_mask:0xf bank_mask:0xf")
    for sw in ("v_permlane16_swap_b32", "v_permlane32_swap_b32"):
        for k in range(8):
            e(f"v_mov_b32 v{40 + k}, v{32 + k}")
        for k in range(8):
            e(f"{sw} v{32 + k}, v{40 + k}")
        for k in range(8):
            e(f"v_add_f32 v{32 + k}, v{32 + k}, v{40 + k}")
    for i in range(4):
        sm, sq = 32 + 2 * i, 33 + 2 * i
        e(f"v_mul_f32 v{sm}, 0x3b000000, v{sm}")
        e(f"v_mul_f32 v{sq}, 0x3b000000, v{sq}")
        e(f"v_fma_f32 v{sq}, -v{sm}, v{sm}, v{sq}")
        e(f"v_max_f32 v{sq}, 0, v{sq}")
        e(f"v_cvt_pk_bf16_f32 v{sm}, v{sm}, v{sq}")
        e(f"v_lshlrev_b32 v{56 + 2 * i}, 16, v{sm}")
        e(f"v_and_b32 v{sq}, 0xffff0000, v{sm}")
        e(f"v_add_f32 v{sq}, 0x3727c5ac, v{sq}")
        e(f"v_cvt_pk_bf16_f32 v{sq}, v{sq}, v{sq}")
        e(f"v_lshlrev_b32 v{sq}, 16, v{sq}")
        e(f"v_sqrt_f32 v{sq}, v{sq}")
        e(f"v_cvt_pk_bf16_f32 v{sq}, v{sq}, v{sq}")
        e(f"v_lshlrev_b32 v{sq}, 16, v{sq}")
        e(f"v_rcp_f32 v{52 + i}, v{sq}")
        e(f"v_fma_f32 v{sm}, -v{sq}, v{52 + i}, 1.0")
        e(f"v_fma_f32 v{52 + i}, v{sm}, v{52 + i}, v{52 + i}")
        e(f"v_sub_f32 v{48 + i}, 0, v{56 + 2 * i}")
        e(f"v_mov_b32 v{57 + 2 * i}, v{52 + i}")
    for i in range(4):
        for j in range(4):
            r = 16 + 4 * i + j
            e(f"v_dot2_f32_bf16 v{64 + 2 * j}, v{r}, v5, v{48 + i}")
            e(f"v_dot2_f32_bf16 v{65 + 2 * j}, v{r}, v6, v{48 + i}")
        for j in range(4):
            r = 16 + 4 * i + j
            e(f"v_cvt_pk_bf16_f32 v{r}, v{64 + 2 * j}, v{65 + 2 * j}")
        for j in range(4):
            r = 16 + 4 * i + j
            e(f"v_lshlrev_b32 v{64 + 2 * j}, 16, v{r}")
            e(f"v_and_b32 v{65 + 2 * j}, 0xffff0000, v{r}")
        for j in range(4):
            e(f"v_mul_f32 v{64 + 2 * j}, v{64 + 2 * j}, v{52 + i}")
            e(f"v_mul_f32 v{65 + 2 * j}, v{65 + 2 * j}, v{52 + i}")
        for j in range(4):
            r = 16 + 4 * i + j
            e(f"v_cvt_pk_bf16_f32 v{r}, v{64 + 2 * j}, v{65 + 2 * j}")
        e(f"buffer_store_dwordx4 {vr(16 + 4 * i, 4)}, v7, {sr(WSD, 4)}, 0 offen offset:{16 * i} {K0ST}", tag='o')
    e("s_lshl_b32 s4, s3, 3")
    e(f"s_add_u32 s4, s4, {WS_STATS}")
    e("v_mov_b32 v8, s4")
    e("s_mov_b64 exec, 1", defs=[('exec', 0)], uses=[])
    e(f"buffer_store_dwordx4 v[56:59], v8, {sr(WSD, 4)}, 0 offen", tag='o')
    e(f"buffer_store_dwordx4 v[60:63], v8, {sr(WSD, 4)}, 0 offen offset:16", tag='o')
    e("s_endpgm")
    a.label("K0_NOTLN")
    a.nop(2)
    e("s_cmp_ge_u32 s2, 256")
    e("s_cbranch_scc0 K0_GLU")
    e("s_sub_u32 s3, s2, 256")
    e("s_lshl_b32 s3, s3, 2")
    e(f"s_add_u32 s3, s3, s{sW}")
    e("v_lshlrev_b32 v3, 4, v1")
    e("s_lshl_b32 s4, s3, 11")
    e("s_mul_i32 s5, s3, 7168")
    for k, P in enumerate((P_BRE, P_BIM, P_CRE, P_CIM)):
        srd(a, SA, P, 524288)
        e(f"buffer_load_dwordx4 {vr(16 + 8 * k, 4)}, v3, {sr(SA, 4)}, s4 offen", tag='p')
        e(f"buffer_load_dwordx4 {vr(20 + 8 * k, 4)}, v3, {sr(SA, 4)}, s4 offen offset:1024", tag='p')
        a.nop(4)
    srd(a, SB, P_WD, 1835008)
    for k in range(7):
        e(f"s_add_u32 s6, s5, {1024 * k}")
        e(f"buffer_load_dwordx4 {vr(48 + 4 * (k & 3), 4)}, v3, {sr(SB, 4)}, s6 offen", tag='p')
    vm0(a)
    e("s_endpgm")
    a.label("K0_GLU")
    a.nop(2)
    if not JOBS & 2:
        e("s_endpgm")
    UPOFF = 14336
    e("s_sub_u32 s3, s2, 128")
    e("s_lshr_b32 s4, s3, 2")
    e("s_and_b32 s5, s3, 3")
    e(f"s_cmp_lt_u32 s{sW}, 2")
    e(f"s_cselect_b32 s{SA}, s{P_WG}, s{P_WU}")
    e(f"s_cselect_b32 s{SA + 1}, s{P_WG + 1}, s{P_WU + 1}")
    e(f"s_cselect_b32 s7, 0, {UPOFF}")
    e(f"s_and_b32 s{SA + 1}, s{SA + 1}, 0xffff")
    e(f"s_mov_b32 s{SA + 2}, 1835008")
    e(f"s_mov_b32 s{SA + 3}, 0x00020000")
    e(f"s_and_b32 s6, s{sW}, 1")
    e("s_mul_i32 s6, s6, 7")
    e("s_mul_i32 s20, s4, 57344")
    e("s_mul_i32 s21, s5, 896")
    e("s_add_u32 s20, s20, s21")
    e("s_movk_i32 s22, 1171")
    e("s_movk_i32 s23, 3584")
    for i in range(7):
        e(f"s_add_u32 s24, s6, {i}")
        e("s_lshl_b32 s25, s24, 6")
        e("v_add_u32 v3, s25, v1")
        e("v_mul_lo_u32 v4, v3, s22")
        e("v_lshrrev_b32 v4, 16, v4")
        e("v_mul_u32_u24 v5, 56, v4")
        e("v_sub_u32 v5, v3, v5")
        e("v_mul_lo_u32 v4, v4, s23")
        e("v_lshl_add_u32 v4, v5, 4, v4")
        e("s_lshl_b32 s25, s24, 10")
        e("s_add_u32 m0, s25, s7")
        e(f"buffer_load_dwordx4 v4, {sr(SA, 4)}, s20 offen lds", tag='d')
    e("v_lshrrev_b32 v7, 4, v1")
    e("v_and_b32 v8, 1, v7")
    e("v_lshrrev_b32 v9, 1, v7")
    e("v_bfe_u32 v10, v1, 2, 2")
    e("v_lshl_add_u32 v10, v9, 3, v10")
    e("v_mul_u32_u24 v10, 896, v10")
    e(f"v_mul_u32_u24 v8, {UPOFF}, v8")
    e("v_add_u32 v10, v10, v8")
    e("v_and_b32 v11, 1, v1")
    e("v_bfe_u32 v12, v1, 1, 1")
    e("v_lshl_add_u32 v10, v11, 4, v10")
    e("v_lshl_add_u32 v10, v12, 3, v10")
    e(f"s_mul_i32 s24, s{sW}, 224")
    e("v_add_u32 v10, s24, v10")
    e("s_lshl_b32 s24, s5, 2")
    e(f"s_add_u32 s24, s24, s{sW}")
    e("s_mul_i32 s24, s24, 294912")
    e("s_lshl_b32 s25, s4, 10")
    e("s_add_u32 s24, s24, s25")
    e(f"s_add_u32 s24, s24, {WS_W1}")
    e("v_lshlrev_b32 v11, 4, v1")
    e("v_add_u32 v11, s24, v11")
    vm0(a)
    e("s_barrier")
    for T in range(7):
        for h in range(2):
            e(f"ds_read_b64_tr_b16 {vr(16 + 4 * T + 2 * h, 2)}, v10 offset:{4 * h * 896 + 32 * T}", tag=('t', T))
    for T in range(7):
        a.wait_lg(tag=('t', T))
        e(f"s_mov_b32 s25, {32768 * T}")
        e(f"buffer_store_dwordx4 {vr(16 + 4 * T, 4)}, v11, {sr(WSD, 4)}, s25 offen {K0ST}", tag='o')
    e("s_endpgm")
    a.label("K0_END")
    e("s_endpgm")
    return a


K1_SCAN = 98304
SC_PITCH = 272
K1_AGGL = K1_SCAN + 128 * SC_PITCH
K1_JOB = K1_AGGL + 2048
K1_LDS = K1_JOB + 16384


def gen_k1_full():
    a = Asm()
    e = a.emit
    WSD, DBG, PLRE, PLIM, PLDT, AGG = 8, 12, 16, 20, 24, 28
    sR, sC, sW = 40, 41, 42
    TORD = [0, 1, 7, 8, 2, 3, 4, 5, 6]
    e("s_cmp_ge_u32 s2, 256")
    e("s_cbranch_scc1 K1_END")
    load_kernargs(a)
    e("v_and_b32 v1, 63, v0")
    e("v_lshrrev_b32 v2, 6, v0")
    e(f"v_readfirstlane_b32 s{sW}, v2")
    MAP = os.environ.get('K1MAP', '4x8')
    e("s_lshr_b32 s3, s2, 3")
    if MAP == '4x8':
        e("s_bfe_u32 s4, s2, 0x20001")
        e("s_lshl_b32 s4, s4, 2")
        e("s_and_b32 s5, s3, 3")
        e(f"s_add_u32 s{sR}, s4, s5")
        e("s_and_b32 s4, s2, 1")
        e("s_lshl_b32 s4, s4, 3")
        e("s_lshr_b32 s5, s3, 2")
        e(f"s_add_u32 s{sC}, s4, s5")
    elif MAP == '8x4':
        e("s_bfe_u32 s4, s2, 0x10002")
        e("s_lshl_b32 s4, s4, 3")
        e("s_and_b32 s5, s3, 7")
        e(f"s_add_u32 s{sR}, s4, s5")
        e("s_and_b32 s4, s2, 3")
        e("s_lshl_b32 s4, s4, 2")
        e("s_lshr_b32 s5, s3, 3")
        e(f"s_add_u32 s{sC}, s4, s5")
    elif MAP == '2x16':
        e("s_and_b32 s4, s2, 7")
        e("s_lshl_b32 s4, s4, 1")
        e("s_and_b32 s5, s3, 1")
        e(f"s_add_u32 s{sR}, s4, s5")
        e(f"s_lshr_b32 s{sC}, s3, 1")
    e("v_lshlrev_b32 v6, 4, v1")
    e("v_and_b32 v3, 31, v1")
    e("v_lshrrev_b32 v4, 5, v1")
    lgk0(a)
    st = Stamper(a, 95, "k1")
    st.stamp("start")
    st.rt(30)
    srd(a, WSD, P_WS, WS_SIZE)
    e(f"s_cmp_ge_u32 s{sW}, 4")
    e("s_cbranch_scc1 K1_COMPUTE")
    e(f"s_mul_i32 s43, s{sC}, 294912")
    e(f"s_lshl_b32 s44, s{sW}, 13")
    e("s_add_u32 s43, s43, s44")
    e(f"s_add_u32 s43, s43, {WS_W1}")

    BRE, BIM, SX, SY = 32, 36, 48, 52
    srd(a, BRE, P_BRE, 524288)
    srd(a, BIM, P_BIM, 524288)
    e(f"s_lshl_b32 s4, s{sC}, 5")
    e(f"s_lshl_b32 s5, s{sW}, 3")
    e("s_add_u32 s4, s4, s5")
    e("s_lshl_b32 s47, s4, 10")
    e(f"s_lshl_b32 s5, s{sW}, 2")
    for k in range(4):
        e(f"s_add_u32 s6, s5, {k}")
        e("s_and_b32 s6, s6, 7")
        e(f"v_xor_b32 v{88 + k}, s6, v1")
        e(f"v_lshlrev_b32 v{88 + k}, 4, v{88 + k}")

    def dma_tile(idx):
        T = TORD[idx]
        slot = idx % 3
        for i in range(8 if not (os.environ.get('K1EXP') == 'nodma' and idx >= 3) else 0):
            e(f"s_add_u32 m0, s44, {slot * 32768 + i * 1024}")
            if T >= 7:
                e(f"s_add_u32 s45, s47, {1024 * i}")
                e(f"buffer_load_dwordx4 v{88 + (i >> 1)}, {sr(BRE if T == 7 else BIM, 4)}, s45 offen lds", tag=('w', idx))
            else:
                e(f"s_add_u32 s45, s43, {T * 32768 + i * 1024}")
                e(f"buffer_load_dwordx4 v6, {sr(WSD, 4)}, s45 offen lds", tag=('w', idx))

    dma_tile(0)
    dma_tile(1)
    srd(a, DBG, P_DBG, 256)
    srd(a, PLRE, P_LRE, 1024)
    srd(a, PLIM, P_LIM, 1024)
    srd(a, PLDT, P_LDT, 1024)
    e(f"s_lshl_b32 s4, s{sC}, 5")
    e("v_add_u32 v7, s4, v3")
    e("v_lshlrev_b32 v7, 1, v7")
    e(f"buffer_load_ushort v24, v7, {sr(PLRE, 4)}, 0 offen", tag='par')
    e(f"buffer_load_ushort v25, v7, {sr(PLIM, 4)}, 0 offen", tag='par')
    e(f"buffer_load_ushort v26, v7, {sr(PLDT, 4)}, 0 offen", tag='par')
    e(f"s_lshl_b32 s3, s{sC}, 12")
    e(f"s_add_u32 s3, s3, {WS_AGG}")
    srd_off(a, AGG, P_WS, 3, 4096)
    RAW = 32
    GA = 64

    def bar(idx):
        if idx == 1:
            return
        a.wait_vm(tag=('w', idx))
        if idx == 0:
            a.wait_vm(tag=('w', 1))
        a.wait_lg(n=0)
        e("s_barrier")
        if idx == 0:
            dma_tile(2)
        elif idx == 2:
            dma_tile(3)
            dma_tile(4)
        elif idx + 2 < 9:
            dma_tile(idx + 2)

    bar(0)
    a.wait_vm(tag='par')
    for t in ("v_lshlrev_b32 v24, 16, v24", "v_lshlrev_b32 v25, 16, v25", "v_lshlrev_b32 v26, 16, v26",
              f"v_mul_f32 v26, {LOG2E:#x}, v26", "v_exp_f32 v26, v26", "v_cvt_pk_bf16_f32 v26, v26, v26",
              "v_lshlrev_b32 v26, 16, v26", "v_mul_f32 v8, v26, v24", "v_mul_f32 v9, v26, v25",
              f"v_mul_f32 v8, {LOG2E:#x}, v8", "v_exp_f32 v8, v8", f"v_mul_f32 v9, {INV2PI:#x}, v9",
              "v_fract_f32 v9, v9", "v_cos_f32 v10, v9", "v_sin_f32 v11, v9",
              "v_mul_f32 v10, v8, v10", "v_mul_f32 v11, v8, v11",
              "v_add_f32 v12, -1.0, v10", "v_mul_f32 v13, v24, v24", "v_fma_f32 v13, v25, v25, v13",
              "v_rcp_f32 v14, v13", "v_fma_f32 v15, -v13, v14, 1.0", "v_fma_f32 v14, v15, v14, v14",
              "v_add_f32 v14, v14, v14", "v_mul_f32 v15, v12, v24", "v_fma_f32 v15, v11, v25, v15",
              "v_mul_f32 v16, v11, v24", "v_fma_f32 v16, -v12, v25, v16",
              "v_mul_f32 v12, v15, v14", "v_mul_f32 v13, v16, v14"):
        e(t)

    def csq(dr, di, sr_, si_):
        for t in (f"v_mul_f32 v18, v{si_}, v{si_}", f"v_mul_f32 v19, v{sr_}, v{si_}",
                  f"v_fma_f32 v{dr}, v{sr_}, v{sr_}, -v18", f"v_add_f32 v{di}, v19, v19"):
            e(t)
    csq(14, 15, 10, 11)
    for _ in range(3):
        csq(14, 15, 14, 15)
    csq(16, 17, 14, 15)
    csq(16, 17, 16, 17)
    csq(16, 17, 16, 17)
    for t in (f"s_lshl_b32 s3, s{sW}, 1", "v_add_u32 v20, s3, v4",
              f"v_mul_u32_u24 v21, {16 * SC_PITCH}, v20", "v_lshl_add_u32 v21, v3, 2, v21",
              f"v_add_u32 v21, {K1_SCAN}, v21",
              "v_lshlrev_b32 v22, 8, v20", "v_lshl_add_u32 v22, v3, 3, v22", f"v_add_u32 v22, {K1_AGGL}, v22",
              "v_lshlrev_b32 v23, 3, v3", f"v_add_u32 v23, {K1_AGGL}, v23"):
        e(t)
    bar(1)
    bar(2)
    bar(3)
    bar(4)
    bar(5)
    for i in range(16):
        e(f"ds_read_b32 v{RAW + i}, v21 offset:{i * SC_PITCH}", tag=('s', i))
        e(f"ds_read_b32 v{RAW + 16 + i}, v21 offset:{i * SC_PITCH + 128}", tag=('s', i))
    for i in range(1, 16):
        r, im, pr, pi = RAW + i, RAW + 16 + i, RAW + i - 1, RAW + 15 + i
        a.wait_lg(tag=('s', i))
        e(f"v_fma_f32 v{r}, v10, v{pr}, v{r}")
        e(f"v_fma_f32 v{im}, v10, v{pi}, v{im}")
        e(f"v_fma_f32 v{r}, -v11, v{pi}, v{r}")
        e(f"v_fma_f32 v{im}, v11, v{pr}, v{im}")
    e(f"v_mov_b32 v28, v{RAW + 15}")
    e(f"v_mov_b32 v29, v{RAW + 31}")
    e("ds_write_b64 v22, v[28:29]", tag='w')
    bar(6)
    for j in range(7):
        e(f"ds_read_b64 {vr(GA + 2 * j, 2)}, v23 offset:{256 * j}", tag=('g', j))
    for t in ("v_mov_b32 v24, 0", "v_mov_b32 v25, 0", "v_mov_b32 v26, 1.0", "v_mov_b32 v27, 0"):
        e(t)
    for j in range(7):
        gr, gi = GA + 2 * j, GA + 1 + 2 * j
        a.wait_lg(tag=('g', j))
        e(f"v_cmp_lt_u32 vcc, {j}, v20")
        for t in (f"v_fma_f32 v{gr}, v14, v24, v{gr}", f"v_fma_f32 v{gi}, v14, v25, v{gi}",
                  f"v_fma_f32 v{gr}, -v15, v25, v{gr}", f"v_fma_f32 v{gi}, v15, v24, v{gi}",
                  "v_mul_f32 v28, v14, v26", "v_mul_f32 v29, v14, v27",
                  "v_fma_f32 v28, -v15, v27, v28", "v_fma_f32 v29, v15, v26, v29",
                  f"v_cndmask_b32 v24, v24, v{gr}, vcc", f"v_cndmask_b32 v25, v25, v{gi}, vcc",
                  "v_cndmask_b32 v26, v26, v28, vcc", "v_cndmask_b32 v27, v27, v29, vcc"):
            e(t)
    for t in (f"v_fma_f32 v28, v14, v24, v{RAW + 15}", f"v_fma_f32 v29, v14, v25, v{RAW + 31}",
              "v_fma_f32 v28, -v15, v25, v28", "v_fma_f32 v29, v15, v24, v29",
              f"s_lshl_b32 s3, s{sR}, 8", "v_lshl_add_u32 v30, v3, 3, s3",
              f"s_lshl_b32 s4, s{sC}, 2", "v_mov_b32 v31, s4",
              f"s_lshl_b32 s5, 1, s{sR}", "v_mov_b32 v7, s5"):
        e(t)
    e("v_or_b32 v28, 1, v28")
    e(f"s_cmp_eq_u32 s{sW}, 3")
    e("s_cbranch_scc0 K1_NOPUB")
    e("s_mov_b32 exec_lo, 0", defs=[('exec', 0)], uses=[])
    e(f"buffer_store_dwordx2 v[28:29], v30, {sr(AGG, 4)}, 0 offen sc0 sc1", tag='pub')
    e("s_mov_b64 exec, -1", defs=[('exec', 0)], uses=[])
    a.label("K1_NOPUB")
    a.nop(2)
    a.vm = [t for t in a.vm if t != 'pub']
    bar(7)
    e("s_lshl_b32 s56, s2, 2")
    e(f"s_add_u32 s56, s56, s{sW}")
    e(f"s_lshl_b32 s57, s{sW}, 12")
    e(f"s_add_u32 s57, s57, {K1_JOB}")
    e("s_cmp_ge_u32 s56, 448")
    e("s_cbranch_scc1 K1_JOBC")
    srd(a, SX, P_WD, 1835008)
    e("s_lshr_b32 s4, s56, 3")
    e("s_and_b32 s5, s56, 7")
    e("s_lshl_b32 s6, s4, 15")
    e("s_lshl_b32 s7, s5, 7")
    e("s_add_u32 s6, s6, s7")
    e("v_lshrrev_b32 v28, 3, v1")
    e("v_lshlrev_b32 v28, 10, v28")
    e("v_and_b32 v29, 7, v1")
    e("v_lshl_add_u32 v28, v29, 4, v28")
    for i in range(4):
        e(f"s_add_u32 m0, s57, {1024 * i}")
        e(f"s_add_u32 s20, s6, {8192 * i}")
        e(f"buffer_load_dwordx4 v28, {sr(SX, 4)}, s20 offen lds", tag='job')
    e("s_mul_i32 s58, s5, 88")
    e("s_add_u32 s58, s58, s4")
    e("s_add_u32 s58, s58, 32")
    e("s_lshl_b32 s58, s58, 12")
    e(f"s_add_u32 s58, s58, {WS_W2}")
    e("s_branch K1_JOBISSUED")
    a.label("K1_JOBC")
    a.nop(2)
    e("s_cmp_ge_u32 s56, 960")
    e("s_cbranch_scc1 K1_JOBISSUED")
    e("s_sub_u32 s3, s56, 448")
    e("s_lshr_b32 s4, s3, 6")
    e("s_bfe_u32 s5, s3, 0x40002")
    e("s_bfe_u32 s6, s3, 0x10001")
    e("s_and_b32 s7, s3, 1")
    e("s_cmp_eq_u32 s6, 0")
    e(f"s_cselect_b32 s{SX}, s{P_CRE}, s{P_CIM}")
    e(f"s_cselect_b32 s{SX + 1}, s{P_CRE + 1}, s{P_CIM + 1}")
    e(f"s_and_b32 s{SX + 1}, s{SX + 1}, 0xffff")
    e(f"s_mov_b32 s{SX + 2}, 524288")
    e(f"s_mov_b32 s{SX + 3}, 0x00020000")
    e("s_lshl_b32 s20, s4, 6")
    e("s_lshl_b32 s21, s7, 5")
    e("s_add_u32 s20, s20, s21")
    e("v_and_b32 v28, 15, v1")
    e("v_add_u32 v28, s20, v28")
    e("v_lshlrev_b32 v28, 10, v28")
    e("v_lshrrev_b32 v29, 4, v1")
    e("v_lshl_add_u32 v28, v29, 4, v28")
    e("s_lshl_b32 s20, s5, 6")
    e("s_add_u32 s21, s20, 16384")
    e("s_mov_b32 m0, s57")
    e(f"buffer_load_dwordx4 v28, {sr(SX, 4)}, s20 offen lds", tag='job')
    e("s_add_u32 m0, s57, 1024")
    e(f"buffer_load_dwordx4 v28, {sr(SX, 4)}, s21 offen lds", tag='job')
    e("s_mul_i32 s58, s4, 88")
    e("s_lshl_b32 s21, s5, 1")
    e("s_add_u32 s58, s58, s21")
    e("s_add_u32 s58, s58, s6")
    e("s_lshl_b32 s58, s58, 12")
    e("s_lshl_b32 s21, s7, 11")
    e("s_add_u32 s58, s58, s21")
    e(f"s_add_u32 s58, s58, {WS_W2}")
    a.label("K1_JOBISSUED")
    a.nop(2)
    a.vm = [t for t in a.vm if t != 'job']
    for i in range(16):
        r, im = RAW + i, RAW + 16 + i
        for t in (f"v_mul_f32 v28, v12, v{r}", f"v_mul_f32 v29, v12, v{im}",
                  f"v_fma_f32 v28, -v13, v{im}, v28", f"v_fma_f32 v{im}, -v13, v{r}, -v29", f"v_mov_b32 v{r}, v28"):
            e(t)
    bar(8)
    st.stamp("L bar8")
    e("v_lshlrev_b32 v30, 3, v3")
    for t in (f"s_lshl_b32 s3, s{sR}, 1", "s_mul_i32 s3, s3, 88", f"s_lshl_b32 s4, s{sC}, 1", "s_add_u32 s3, s3, s4",
              "s_lshl_b32 s3, s3, 12", f"s_add_u32 s3, s3, {WS_AF}",
              "v_lshrrev_b32 v2, 2, v20", "v_mul_u32_u24 v2, 88, v2", "v_and_b32 v31, 1, v3",
              "v_add_u32 v2, v2, v31", "v_lshlrev_b32 v2, 12, v2", "v_add_u32 v2, s3, v2",
              "v_and_b32 v7, 3, v20", "v_lshl_add_u32 v2, v7, 10, v2",
              "v_lshrrev_b32 v7, 3, v3", "v_lshl_add_u32 v2, v7, 8, v2",
              "v_and_b32 v7, 6, v3", "v_lshl_add_u32 v2, v7, 1, v2",
              "v_cmp_eq_u32 vcc, 1, v31", "v_mov_b32 v28, 0", "v_mov_b32 v29, 0"):
        e(t)
    a.label("K1_POLL")
    a.nop(2)
    for i in range(15):
        e(f"buffer_load_dwordx2 {vr(GA + 2 * i, 2)}, v30, {sr(AGG, 4)}, 0 offen offset:{256 * i} sc0 sc1", tag=('c', i))
    e("v_mov_b32 v7, 1")
    vm0(a)
    for i in range(15):
        e(f"s_cmp_le_u32 s{sR}, {i}")
        e("s_cbranch_scc1 K1_CHKDONE")
        e(f"v_and_b32 v7, v7, v{GA + 2 * i}")
    a.label("K1_CHKDONE")
    a.nop(2)
    e("v_cmp_eq_u32 s[6:7], 1, v7")
    e("s_cmp_eq_u64 s[6:7], -1")
    e("s_cbranch_scc1 K1_POLLDONE")
    e("s_sleep 2")
    e("s_branch K1_POLL")
    a.label("K1_POLLDONE")
    a.nop(2)
    st.stamp("L polled")
    for i in range(15):
        e(f"s_cmp_le_u32 s{sR}, {i}")
        e("s_cbranch_scc1 K1_CARRYDONE")
        gr, gi = GA + 2 * i, GA + 1 + 2 * i
        e(f"v_fma_f32 v{gr}, v16, v28, v{gr}")
        e(f"v_fma_f32 v{gi}, v16, v29, v{gi}")
        e(f"v_fma_f32 v{gr}, -v17, v29, v{gr}")
        e(f"v_fma_f32 v{gi}, v17, v28, v{gi}")
        e(f"v_mov_b32 v28, v{gr}")
        e(f"v_mov_b32 v29, v{gi}")
    a.label("K1_CARRYDONE")
    a.nop(2)
    for t in ("v_fma_f32 v24, v26, v28, v24", "v_fma_f32 v25, v26, v29, v25",
              "v_fma_f32 v24, -v27, v29, v24", "v_fma_f32 v25, v27, v28, v25",
              "v_mul_f32 v26, v12, v24", "v_mul_f32 v27, v12, v25",
              "v_fma_f32 v26, -v13, v25, v26", "v_fma_f32 v27, v13, v24, v27"):
        e(t)
    vm0(a)
    e("s_cmp_ge_u32 s56, 448")
    e("s_cbranch_scc1 K1_JOBC2")
    e("v_lshrrev_b32 v28, 4, v1")
    e("v_bfe_u32 v29, v1, 2, 2")
    e("v_lshl_add_u32 v28, v28, 3, v29")
    e("v_lshlrev_b32 v28, 7, v28")
    e("v_and_b32 v29, 3, v1")
    e("v_lshl_add_u32 v28, v29, 3, v28")
    e("v_add_u32 v28, s57, v28")
    for mt in range(4):
        for h in range(2):
            e(f"ds_read_b64_tr_b16 {vr(GA + 4 * mt + 2 * h, 2)}, v28 offset:{512 * h + 32 * mt}", tag=('jt', mt))
    for mt in range(4):
        a.wait_lg(tag=('jt', mt))
        e(f"buffer_store_dwordx4 {vr(GA + 4 * mt, 4)}, v6, {sr(WSD, 4)}, s58 offen offset:{1024 * mt}", tag='jo')
    e("s_branch K1_JOBDONE")
    a.label("K1_JOBC2")
    a.nop(2)
    e("s_cmp_ge_u32 s56, 960")
    e("s_cbranch_scc1 K1_JOBDONE")
    e("v_add_u32 v28, s57, v6")
    e(f"ds_read_b128 {vr(GA, 4)}, v28", tag='jt')
    e(f"ds_read_b128 {vr(GA + 4, 4)}, v28 offset:1024", tag='jt')
    a.wait_lg(n=0)
    e(f"buffer_store_dwordx4 {vr(GA, 4)}, v6, {sr(WSD, 4)}, s58 offen", tag='jo')
    e(f"buffer_store_dwordx4 {vr(GA + 4, 4)}, v6, {sr(WSD, 4)}, s58 offen offset:1024", tag='jo')
    a.label("K1_JOBDONE")
    a.nop(2)
    for i in range(16):
        r, im = RAW + i, RAW + 16 + i
        fr, fi, nr, ni = (26, 27, 24, 25) if i % 2 == 0 else (24, 25, 26, 27)
        for t in (f"v_mul_f32 v{nr}, v10, v{fr}", f"v_mul_f32 v{ni}, v10, v{fi}",
                  f"v_fma_f32 v{nr}, -v11, v{fi}, v{nr}", f"v_fma_f32 v{ni}, v11, v{fr}, v{ni}",
                  f"v_add_f32 v{r}, v{r}, v{nr}", f"v_sub_f32 v{im}, v{im}, v{ni}",
                  f"v_cndmask_b32 v28, v{im}, v{r}, vcc",
                  "v_mov_b32_dpp v29, v28 quad_perm:[1,0,3,2] row_mask:0xf bank_mask:0xf",
                  f"v_cndmask_b32 v28, v{r}, v29, vcc", f"v_cndmask_b32 v29, v29, v{im}, vcc",
                  f"v_cvt_pk_bf16_f32 v{r}, v28, v29"):
            e(t)
        e(f"buffer_store_dword v{r}, v2, {sr(WSD, 4)}, 0 offen offset:{16 * i}", tag='hs')
    st.stamp("L end")
    st.dump(WSD, WS_STAMP, 2, shift=11)
    e("s_endpgm")

    a.label("K1_COMPUTE")
    a.nop(4)
    a.vm = []
    a.lg = []
    st.n = 1
    if int(os.environ.get('K1PRIO', '0')):
        e(f"s_setprio {int(os.environ.get('K1PRIO'))}")
    e(f"s_sub_u32 s{sW}, s{sW}, 4")
    e(f"s_lshl_b32 s3, s{sR}, 2")
    e(f"s_add_u32 s3, s3, s{sW}")
    e("s_lshl_b32 s3, s3, 15")
    if WS_XF:
        e(f"s_add_u32 s3, s3, {WS_XF}")
    for s in range(32):
        if s % 4 == 0:
            e(f"s_add_u32 s4, s3, {1024 * s}")
        e(f"buffer_load_dwordx4 {ar(32 + 4 * s, 4)}, v6, {sr(WSD, 4)}, s4 offen offset:{1024 * (s % 4)}", tag=('x', s))
    e(f"v_add_u32 v5, 0x10000, v6")
    for t in (f"s_lshl_b32 s3, s{sW}, 5", "v_add_u32 v7, s3, v3", f"v_mul_u32_u24 v7, {SC_PITCH}, v7",
              "v_lshl_add_u32 v7, v4, 4, v7", f"v_add_u32 v7, {K1_SCAN}, v7",
              f"s_lshl_b32 s3, s{sR}, 1", f"s_lshr_b32 s4, s{sW}, 1", "s_add_u32 s3, s3, s4",
              "s_mul_i32 s3, s3, 88", "s_add_u32 s3, s3, 32", "s_lshl_b32 s3, s3, 12",
              f"s_and_b32 s4, s{sW}, 1", "s_lshl_b32 s4, s4, 11", "s_add_u32 s3, s3, s4",
              f"s_add_u32 s3, s3, {WS_AF}",
              "v_lshrrev_b32 v2, 4, v3", "v_lshlrev_b32 v2, 10, v2", "v_and_b32 v8, 15, v3",
              "v_lshl_add_u32 v2, v8, 4, v2", "v_add_u32 v2, s3, v2",
              f"s_mul_i32 s46, s{sC}, 14", "v_add_u32 v8, s46, v4"):
        e(t)
    e("v_bfe_u32 v9, v3, 1, 3")
    e("v_lshlrev_b32 v10, 10, v3")
    for k in range(4):
        e(f"v_add_u32 v11, {2 * k}, v4")
        e("v_xor_b32 v11, v11, v9")
        e("v_lshl_add_u32 v11, v11, 4, v10")
        e(f"v_add_u32 v{84 + k}, {32768 * (TORD.index(7) % 3)}, v11")
        e(f"v_add_u32 v{88 + k}, {32768 * (TORD.index(8) % 3)}, v11")
    ACC = [32, 48]
    D = int(os.environ.get('K1D', '5'))
    RING = 8

    def ops_dump(acc, part):
        return [(lambda j=j: e(f"ds_write_b128 v7, {vr(acc + 4 * j, 4)} offset:{part * 128 + j * 32}", tag='w')) for j in range(4)]

    def ops_glu(acc, T):
        g, u = acc, acc + 8
        o = 64 + 4 * (T & 1)
        t0 = 72
        L = []
        w = L.append
        for p in range(4):
            w(lambda p=p: e(f"v_cvt_pk_bf16_f32 v{t0 + p}, v{g + 2 * p}, v{g + 2 * p + 1}"))
            w(lambda p=p: e(f"v_cvt_pk_bf16_f32 v{t0 + 4 + p}, v{u + 2 * p}, v{u + 2 * p + 1}"))
        for p in range(4):
            w(lambda p=p: e(f"v_lshlrev_b32 v{g + 2 * p}, 16, v{t0 + p}"))
            w(lambda p=p: e(f"v_and_b32 v{g + 2 * p + 1}, 0xffff0000, v{t0 + p}"))
        for i in range(8):
            w(lambda i=i: e(f"v_mul_f32 v{g + i}, {NLOG2E:#x}, v{g + i}"))
        for i in range(8):
            w(lambda i=i: e(f"v_exp_f32 v{g + i}, v{g + i}"))
            p = i // 2
            if i % 2 == 0:
                w(lambda p=p: e(f"v_lshlrev_b32 v{u + 2 * p}, 16, v{t0 + 4 + p}"))
            else:
                w(lambda p=p: e(f"v_and_b32 v{u + 2 * p + 1}, 0xffff0000, v{t0 + 4 + p}"))
        for i in range(8):
            w(lambda i=i: e(f"v_add_f32 v{g + i}, 1.0, v{g + i}"))
        for i in range(8):
            w(lambda i=i: e(f"v_rcp_f32 v{g + i}, v{g + i}"))
        w(lambda: e(f"v_add_u32 v80, {2 * T}, v8"))
        w(lambda: e("v_lshrrev_b32 v81, 2, v80"))
        w(lambda: e("v_and_b32 v80, 3, v80"))
        w(lambda: e("v_lshl_add_u32 v81, v81, 12, v2"))
        w(lambda: e(f"v_lshl_add_u32 v{82 + (T & 1)}, v80, 8, v81"))
        for p in range(4):
            w(lambda p=p: e(f"v_cvt_pk_bf16_f32 v{t0 + p}, v{g + 2 * p}, v{g + 2 * p + 1}"))
        for p in range(4):
            w(lambda p=p: e(f"v_lshlrev_b32 v{g + 2 * p}, 16, v{t0 + p}"))
            w(lambda p=p: e(f"v_and_b32 v{g + 2 * p + 1}, 0xffff0000, v{t0 + p}"))
        for i in range(8):
            w(lambda i=i: e(f"v_mul_f32 v{g + i}, v{g + i}, v{u + i}"))
        for p in range(4):
            w(lambda p=p: e(f"v_cvt_pk_bf16_f32 v{o + p}, v{g + 2 * p}, v{g + 2 * p + 1}"))
        SF = os.environ.get('K1ST', '')
        if SF != 'none':
            w(lambda: e(f"buffer_store_dwordx4 {vr(o, 4)}, v{82 + (T & 1)}, {sr(WSD, 4)}, 0 offen {SF}", tag='hg'))
        return L

    def frag(n):
        return ar(4 * (n % RING), 4)

    SEQ = []
    for s in range(32):
        SEQ += [(0, s), (1, s)]
    for idx in range(2, 9):
        SEQ += [(idx, s) for s in range(32)]
    NF = len(SEQ)
    ACC3 = {0: 32, 1: 48}
    for idx in range(2, 9):
        ACC3[idx] = 16 if idx == 2 else (32 if idx % 2 == 1 else 48)

    def issue_read(n):
        idx, s = SEQ[n]
        slot = idx % 3
        if s == 0 and idx != 1:
            e("s_barrier")
            st.stamp(f"barrier {idx}")
        base = 5 if slot == 2 else 6
        off = (slot & 1) * 32768 + s * 1024 if slot < 2 else s * 1024
        if TORD[idx] >= 7:
            base = (84 if TORD[idx] == 7 else 88) + (s & 3)
            off = (s >> 2) * 128
        e(f"ds_read_b128 {frag(n)}, v{base} offset:{off}", tag=('f', n))

    for n in range(D):
        issue_read(n)
    pend = []
    for n in range(NF):
        idx, s = SEQ[n]
        acc = ACC3[idx]
        if s == 0 and idx >= 2:
            assert not pend
            prevs = [0, 1] if idx == 2 else [idx - 1]
            for p in prevs[::-1]:
                pT = TORD[p]
                pend += ops_dump(ACC3[p], pT - 7) if pT >= 7 else ops_glu(ACC3[p], pT)
        if idx == 0:
            a.wait_vm(tag=('x', s))
        a.wait_lg(tag=('f', n))
        c = "0" if s == 0 else vr(acc, 16)
        e(f"v_mfma_f32_32x32x16_bf16 {vr(acc, 16)}, {frag(n)}, {ar(32 + 4 * s, 4)}, {c}")
        if s >= 2 and idx >= 2:
            rem = max(1, (32 - D) - s)
            k = (len(pend) + rem - 1) // rem if pend else 0
            for _ in range(k):
                if pend:
                    pend.pop(0)()
        if n + D < NF:
            if SEQ[n + D][1] == 0 and SEQ[n + D][0] >= 2:
                assert not pend
                a.wait_lg(tag='w')
            issue_read(n + D)
    st.stamp("main end")
    for op in ops_glu(ACC3[8], TORD[8]):
        op()
    st.stamp("end")
    st.rt(31)
    st.dump(WSD, WS_STAMP, 2, shift=11)
    a.label("K1_END")
    e("s_endpgm")
    return a


K2_LDS = 131072
ROT = int(os.environ.get('K2ROT', '1'))
K2_START = [0, 11, 22, 32, 44, 55, 66, 77]
K2_CNT = [11, 11, 10, 12, 11, 11, 11, 11]


def gen_k2():
    a = Asm()
    e = a.emit
    WSD, XS, DSK, OUT = 8, 24, 28, 32
    sRB, sCB, sW = 40, 41, 42
    e("s_cmp_ge_u32 s2, 256")
    e("s_cbranch_scc1 K2_END")
    load_kernargs(a)
    e("v_and_b32 v1, 63, v0")
    e("v_lshrrev_b32 v2, 6, v0")
    e(f"v_readfirstlane_b32 s{sW}, v2")
    e("s_and_b32 s3, s2, 7")
    e("s_lshr_b32 s4, s2, 3")
    e(f"s_and_b32 s{sCB}, s4, 7")
    e("s_lshr_b32 s4, s4, 3")
    e("s_lshl_b32 s3, s3, 2")
    e(f"s_add_u32 s{sRB}, s3, s4")
    e("v_lshlrev_b32 v6, 4, v1")
    e(f"s_mul_i32 s44, s{sRB}, {88 * 4096}")
    e(f"s_add_u32 s44, s44, {WS_AF}")
    e(f"s_mul_i32 s45, s{sCB}, {88 * 4096}")
    e(f"s_add_u32 s45, s45, {WS_W2}")
    e(f"s_lshl_b32 s3, s{sW}, 15")
    e("s_add_u32 s46, s44, s3")
    e("s_add_u32 s47, s45, s3")
    e(f"s_mul_i32 s3, s{sW}, {14 * 4096}")
    e(f"s_add_u32 s3, s3, {32 * 4096}")
    e("s_add_u32 s48, s44, s3")
    e("s_add_u32 s49, s45, s3")
    lgk0(a)
    st = Stamper(a, 31, "k2")
    st.stamp("start")
    st.rt(30)
    srd(a, WSD, P_WS, WS_SIZE)
    NBUF = int(os.environ.get("K2NB", "11"))
    NSTEP = 22

    def buf(n, off):
        b = n % NBUF
        return vr(32 + 32 * b + off, 4) if b < 5 else ar(128 + 32 * (b - 5) + off, 4)

    def issue_loads(n):
        sa, sw, j = (46, 47, n) if n < 8 else (48, 49, n - 8)
        e(f"s_add_u32 s7, s{sw}, {4096 * j}")
        e(f"s_add_u32 s20, s{sa}, {4096 * j}")
        for t in range(4):
            e(f"buffer_load_dwordx4 {buf(n, 4 * t)}, v6, {sr(WSD, 4)}, s7 offen offset:{1024 * t}", tag=('l', n))
            e(f"buffer_load_dwordx4 {buf(n, 16 + 4 * t)}, v6, {sr(WSD, 4)}, s20 offen offset:{1024 * t}", tag=('l', n))

    PF = min(NBUF - 1, 7)
    for n in range(PF):
        issue_loads(n)
    srd(a, XS, P_X, 2097152)
    srd(a, DSK, P_DSK, 1024)
    srd(a, OUT, P_OUT, 4194304)
    e("v_and_b32 v3, 15, v1")
    e("v_lshrrev_b32 v4, 4, v1")
    e(f"s_lshl_b32 s3, s{sRB}, 6")
    e(f"s_lshl_b32 s4, s{sW}, 4")
    e("s_add_u32 s3, s3, s4")
    e("v_add_u32 v8, s3, v3")
    e(f"s_lshl_b32 s4, s{sCB}, 6")
    e("v_lshl_add_u32 v14, v4, 2, s4")
    e("v_lshlrev_b32 v11, 10, v8")
    e("v_lshl_add_u32 v11, v14, 1, v11")
    e("v_lshlrev_b32 v12, 1, v14")
    e("v_lshlrev_b32 v13, 3, v8")
    e(f"v_add_u32 v13, {WS_STATS}, v13")
    e(f"s_lshl_b32 s3, s{sW}, 12")
    e("v_add_u32 v9, s3, v6")
    e("v_add_u32 v10, 0x10000, v9")
    e(f"s_lshl_b32 s3, s{sW}, 14")
    e("v_add_u32 v15, s3, v6")
    e("v_add_u32 v16, 0x10000, v15")
    XR, DR, SR_ = 192 + 32, 192 + 40, 192 + 48
    YS = 192

    def epi_loads():
        for mt in range(4):
            e(f"buffer_load_dwordx2 {vr(XR + 2 * mt, 2)}, v11, {sr(XS, 4)}, 0 offen offset:{32 * mt}", tag='e')
            e(f"buffer_load_dwordx2 {vr(DR + 2 * mt, 2)}, v12, {sr(DSK, 4)}, 0 offen offset:{32 * mt}", tag='e')
        e(f"buffer_load_dwordx2 {vr(SR_, 2)}, v13, {sr(WSD, 4)}, 0 offen", tag='e')

    def write_part(accb, base):
        for nt in range(4):
            for mt in range(4):
                e(f"ds_write_b128 v{base}, {ar(accb + 16 * nt + 4 * mt, 4)} offset:{nt * 16384 + mt * 1024}", tag='w')

    def read_sum(base, dst):
        for mt in range(4):
            e(f"ds_read_b128 {vr(dst + 4 * mt, 4)}, v{base} offset:{mt * 1024}", tag=('r', 0))
        for sidx in range(1, 4):
            for mt in range(4):
                t = 244 + 4 * (mt % 3)
                e(f"ds_read_b128 {vr(t, 4)}, v{base} offset:{sidx * 4096 + mt * 1024}", tag=('r', sidx, mt))
                a.wait_lg(tag=('r', sidx, mt))
                for i in range(4):
                    e(f"v_add_f32 v{dst + 4 * mt + i}, v{dst + 4 * mt + i}, v{t + i}")

    nxt = PF
    for n in range(NSTEP):
        while nxt < NSTEP and nxt <= n + NBUF - 1 and len(a.vm) + 8 <= 63:
            issue_loads(nxt)
            nxt += 1
        if n == 0:
            epi_loads()
        if n == 12:
            for m in range(4):
                for p in range(2):
                    xr, dr = XR + 2 * m + p, DR + 2 * m + p
                    y0, y1 = YS + 4 * m + 2 * p, YS + 1 + 4 * m + 2 * p
                    x0, x1 = YS + 16 + 4 * m + 2 * p, YS + 17 + 4 * m + 2 * p
                    for t in (f"v_lshlrev_b32 v{x0}, 16, v{xr}", f"v_and_b32 v{x1}, 0xffff0000, v{xr}",
                              f"v_sub_f32 v244, v{x0}, v{SR_}", f"v_sub_f32 v245, v{x1}, v{SR_}", "v_cvt_pk_bf16_f32 v246, v244, v245",
                              "v_lshlrev_b32 v244, 16, v246", "v_and_b32 v245, 0xffff0000, v246",
                              f"v_mul_f32 v244, v244, v{SR_ + 1}", f"v_mul_f32 v245, v245, v{SR_ + 1}", "v_cvt_pk_bf16_f32 v246, v244, v245",
                              "v_lshlrev_b32 v244, 16, v246", "v_and_b32 v245, 0xffff0000, v246",
                              f"v_lshlrev_b32 v247, 16, v{dr}", f"v_and_b32 v248, 0xffff0000, v{dr}",
                              "v_mul_f32 v244, v244, v247", "v_mul_f32 v245, v245, v248", "v_cvt_pk_bf16_f32 v246, v244, v245",
                              f"v_lshlrev_b32 v{y0}, 16, v246", f"v_and_b32 v{y1}, 0xffff0000, v246"):
                        e(t)
        if n == 10:
            write_part(0, 9)
        a.wait_vm(tag=('l', n))
        if n % 2 == 0:
            st.stamp(f"step {n}")
        accb = 0 if n < 8 else 64
        for nt in range(4):
            for mt in range(4):
                d = accb + 16 * nt + 4 * mt
                c = "0" if n in (0, 8) else ar(d, 4)
                e(f"v_mfma_f32_16x16x32_bf16 {ar(d, 4)}, {buf(n, 4 * mt)}, {buf(n, 16 + 4 * nt)}, {c}")
    st.stamp("main end")
    write_part(64, 10)
    e("v_lshlrev_b32 v11, 1, v11")
    a.wait_lg(n=0)
    e("s_barrier")
    DS = 32
    for sidx in range(4):
        for mt in range(4):
            e(f"ds_read_b128 {vr(DS + 16 * sidx + 4 * mt, 4)}, v16 offset:{sidx * 4096 + mt * 1024}", tag=('r', sidx))
    for sidx in range(4):
        for mt in range(4):
            e(f"ds_read_b128 {vr(128 + 16 * sidx + 4 * mt, 4)}, v15 offset:{sidx * 4096 + mt * 1024}", tag=('ry', sidx))
    a.wait_lg(tag=('r', 1))
    for i in range(16):
        e(f"v_add_f32 v{DS + i}, v{DS + i}, v{DS + 16 + i}")
    a.wait_lg(tag=('r', 3))
    for i in range(16):
        e(f"v_add_f32 v{DS + 32 + i}, v{DS + 32 + i}, v{DS + 48 + i}")
    for i in range(16):
        e(f"v_add_f32 v{DS + i}, v{DS + i}, v{DS + 32 + i}")
    st.stamp("reduced")
    T0, T1 = 96, 112
    for p in range(8):
        e(f"v_cvt_pk_bf16_f32 v{T0 + p}, v{DS + 2 * p}, v{DS + 2 * p + 1}")
    for p in range(8):
        e(f"v_lshlrev_b32 v{DS + 2 * p}, 16, v{T0 + p}")
        e(f"v_and_b32 v{DS + 2 * p + 1}, 0xffff0000, v{T0 + p}")
    for i in range(16):
        e(f"v_mul_f32 v{T1 + i}, {NLOG2E:#x}, v{DS + i}")
    for i in range(16):
        e(f"v_exp_f32 v{T1 + i}, v{T1 + i}")
    for i in range(16):
        e(f"v_add_f32 v{T1 + i}, 1.0, v{T1 + i}")
    for i in range(16):
        e(f"v_rcp_f32 v{T1 + i}, v{T1 + i}")
    for i in range(16):
        e(f"v_mul_f32 v{T1 + i}, v{DS + i}, v{T1 + i}")
    for p in range(8):
        e(f"v_cvt_pk_bf16_f32 v{T0 + p}, v{T1 + 2 * p}, v{T1 + 2 * p + 1}")
    for p in range(8):
        e(f"v_lshlrev_b32 v{DS + 2 * p}, 16, v{T0 + p}")
        e(f"v_and_b32 v{DS + 2 * p + 1}, 0xffff0000, v{T0 + p}")
    a.wait_lg(n=0)
    for i in range(16):
        e(f"v_add_f32 v{128 + i}, v{128 + i}, v{144 + i}")
    for i in range(16):
        e(f"v_add_f32 v{160 + i}, v{160 + i}, v{176 + i}")
    for i in range(16):
        e(f"v_add_f32 v{128 + i}, v{128 + i}, v{160 + i}")
    for i in range(16):
        e(f"v_add_f32 v{YS + i}, v{128 + i}, v{YS + i}")
    for i in range(16):
        e(f"v_mul_f32 v{DS + i}, v{YS + i}, v{DS + i}")
    for i in range(16):
        e(f"v_add_f32 v{DS + i}, v{YS + 16 + i}, v{DS + i}")
    for m in range(4):
        e(f"buffer_store_dwordx4 {vr(DS + 4 * m, 4)}, v11, {sr(OUT, 4)}, 0 offen offset:{64 * m}", tag='o')
    st.stamp("end")
    st.rt(31)
    st.dump(WSD, WS_STAMP + 0x100000, 2, shift=11)
    a.label("K2_END")
    e("s_endpgm")
    return a


def kd(name, nfv, acc):
    return f""".p2align 6
.amdhsa_kernel {name}
  .amdhsa_next_free_vgpr {nfv}
  .amdhsa_next_free_sgpr 102
  .amdhsa_accum_offset {acc}
  .amdhsa_group_segment_fixed_size 0
  .amdhsa_kernarg_size 128
  .amdhsa_user_sgpr_count 2
  .amdhsa_user_sgpr_kernarg_segment_ptr 1
  .amdhsa_system_sgpr_workgroup_id_x 1
  .amdhsa_float_denorm_mode_32 3
  .amdhsa_float_denorm_mode_16_64 3
.end_amdhsa_kernel
"""


def main():
    k0 = gen_k0()
    k1 = gen_k1_full()
    k2 = gen_k2()
    out = []
    out.append(f"; @launch kernel=ssm_k0_kernel grid=({K0_GRID},1,1) block=(256,1,1) lds={K0_LDS}")
    out.append(f"; @launch kernel=ssm_k1_kernel grid=(256,1,1) block=(512,1,1) lds={K1_LDS}")
    out.append(f"; @launch kernel=ssm_k2_kernel grid=(256,1,1) block=(256,1,1) lds={K2_LDS}")
    out.append('.amdgcn_target "amdgcn-amd-amdhsa--gfx950"')
    out.append(".text")
    for nm, k in (("ssm_k0_kernel", k0), ("ssm_k1_kernel", k1), ("ssm_k2_kernel", k2)):
        out.append(f".globl {nm}")
        out.append(".p2align 8")
        out.append(f".type {nm},@function")
        out.append(f"{nm}:")
        out.append(k.text())
    out.append('.section .rodata,"a"')
    out.append(kd("ssm_k0_kernel", 72, 72))
    out.append(kd("ssm_k1_kernel", 256, 96))
    out.append(kd("ssm_k2_kernel", 512, 256))
    txt = "\n".join(out)
    path = sys.argv[1] if len(sys.argv) > 1 else f"cdna_kernels/{NAME}.s"
    open(path, "w").write(txt)
    for nm, k in (("k0", k0), ("k1", k1), ("k2", k2)):
        print(nm, "lines", len(k.lines), "nops", k.nops)


if __name__ == "__main__":
    main()
```

```python
import sys, os
from asmlib import *

NAME = "recurrent_scan__ssm_conv_s5__glu_gated_glu__prompt"
WS_XF = 0x000000
WS_W1 = 0x200000
WS_W2 = 0x700000
WS_AF = 0xA00000
WS_STATS = 0x1500000
WS_AGG = 0x1510000
WS_STAMP = 0x1600000
WS_SIZE = 0x2000000

LOG2E = 0x3FB8AA3B
NLOG2E = 0xBFB8AA3B
INV2PI = 0x3E22F983

STAMP = int(os.environ.get('KSTAMP', '0'))
K0ST = os.environ.get('K0ST', '')

P_X, P_LRE, P_LIM, P_BRE, P_BIM, P_CRE, P_CIM, P_LDT = 64, 66, 68, 70, 72, 74, 76, 78
P_DSK, P_BX, P_WG, P_WU, P_WD, P_OUT, P_DBG, P_WS = 80, 82, 84, 86, 88, 90, 92, 94


class Stamper:
    def __init__(self, a, vreg, name):
        self.a = a; self.v = vreg; self.n = 0; self.name = name

    def stamp(self, name):
        if not STAMP:
            return
        a = self.a
        a.raw("s_memtime s[100:101]")
        a.raw("s_waitcnt lgkmcnt(0)")
        a.pos += 2
        a.lg = []
        a.emit(f"v_writelane_b32 v{self.v}, s100, {self.n}", defs=[('v', self.v)], uses=[])
        print("stamp", self.name, self.n, name)
        self.n += 1

    def rt(self, slot):
        if not STAMP:
            return
        a = self.a
        a.raw("s_memrealtime s[100:101]")
        a.raw("s_waitcnt lgkmcnt(0)")
        a.pos += 2
        a.lg = []
        a.emit(f"v_writelane_b32 v{self.v}, s100, {slot}", defs=[('v', self.v)], uses=[])

    def dump(self, wsd, base, tmp, shift=10):
        if not STAMP:
            return
        a = self.a
        a.emit(f"v_lshlrev_b32 v{tmp}, 2, v0")
        a.emit(f"s_lshl_b32 s100, s2, {shift}")
        a.emit(f"s_add_u32 s100, s100, {base}")
        a.emit(f"v_add_u32 v{tmp}, s100, v{tmp}")
        a.emit(f"buffer_store_dword v{self.v}, v{tmp}, {sr(wsd, 4)}, 0 offen", tag='stamp')


def srd(a, d, base, size):
    a.emit(f"s_mov_b32 s{d}, s{base}")
    a.emit(f"s_and_b32 s{d + 1}, s{base + 1}, 0xffff")
    a.emit(f"s_mov_b32 s{d + 2}, {size}")
    a.emit(f"s_mov_b32 s{d + 3}, 0x00020000")


def srd_off(a, d, base, soff, size):
    a.emit(f"s_add_u32 s{d}, s{base}, s{soff}")
    a.emit(f"s_addc_u32 s{d + 1}, s{base + 1}, 0")
    a.emit(f"s_and_b32 s{d + 1}, s{d + 1}, 0xffff")
    a.emit(f"s_mov_b32 s{d + 2}, {size}")
    a.emit(f"s_mov_b32 s{d + 3}, 0x00020000")


def load_kernargs(a):
    a.raw("s_load_dwordx16 s[64:79], s[0:1], 0")
    a.raw("s_load_dwordx16 s[80:95], s[0:1], 64")
    a.pos += 2


def lgk0(a):
    a.raw("s_waitcnt lgkmcnt(0)")
    a.pos += 1
    a.lg = []


def vm0(a):
    a.raw("s_waitcnt vmcnt(0)")
    a.pos += 1
    a.vm = []


K0_LDS = 32768
K0_GRID = 256 + 64 * int(os.environ.get("K0WARM", "1"))


def gen_k0():
    a = Asm()
    e = a.emit
    WSD, SA, SB = 8, 12, 16
    sW = 42
    e(f"s_cmp_ge_u32 s2, {K0_GRID}")
    e("s_cbranch_scc1 K0_END")
    load_kernargs(a)
    e("v_and_b32 v1, 63, v0")
    e("v_lshrrev_b32 v2, 6, v0")
    e(f"v_readfirstlane_b32 s{sW}, v2")
    lgk0(a)
    srd(a, WSD, P_WS, WS_SIZE)
    e("s_cmp_ge_u32 s2, 256")
    e("s_cbranch_scc1 K0_NOZERO")
    e(f"s_cmp_eq_u32 s{sW}, 0")
    e("s_cbranch_scc0 K0_NOZERO")
    e("s_lshl_b32 s3, s2, 8")
    e(f"s_add_u32 s3, s3, {WS_AGG}")
    e("v_lshlrev_b32 v3, 2, v1")
    e("v_mov_b32 v4, 0")
    e(f"buffer_store_dword v4, v3, {sr(WSD, 4)}, s3 offen", tag='z')
    e("s_cmp_ge_u32 s2, 32")
    e("s_cbranch_scc1 K0_NOZERO")
    e("s_add_u32 s3, s3, 0x10000")
    e(f"buffer_store_dword v4, v3, {sr(WSD, 4)}, s3 offen", tag='z')
    a.label("K0_NOZERO")
    a.nop(2)
    a.vm = []
    e("s_cmp_ge_u32 s2, 128")
    e("s_cbranch_scc1 K0_NOTLN")
    JOBS = int(os.environ.get('K0JOBS', '31'))
    if not JOBS & 1:
        e("s_endpgm")
    srd(a, SA, P_X, 2097152)
    e("s_lshl_b32 s3, s2, 4")
    e(f"s_lshl_b32 s4, s{sW}, 2")
    e("s_add_u32 s3, s3, s4")
    e("s_lshl_b32 s4, s3, 10")
    e("v_lshlrev_b32 v3, 4, v1")
    e("v_add_u32 v3, s4, v3")
    for i in range(4):
        e(f"buffer_load_dwordx4 {vr(16 + 4 * i, 4)}, v3, {sr(SA, 4)}, 0 offen offset:{1024 * i}", tag=('x', i))
    e("v_mov_b32 v4, 0x3f803f80")
    e("v_mov_b32 v5, 0x00003f80")
    e("v_mov_b32 v6, 0x3f800000")
    e("s_lshr_b32 s5, s3, 5")
    e("s_lshl_b32 s5, s5, 15")
    e("s_and_b32 s6, s3, 31")
    e("s_lshl_b32 s6, s6, 4")
    e("s_add_u32 s5, s5, s6")
    e("v_lshrrev_b32 v7, 1, v1")
    e("v_lshlrev_b32 v7, 10, v7")
    e("v_and_b32 v8, 1, v1")
    e("v_lshl_add_u32 v7, v8, 9, v7")
    e("v_add_u32 v7, s5, v7")
    if WS_XF:
        e(f"v_add_u32 v7, {WS_XF}, v7")
    for i in range(4):
        a.wait_vm(tag=('x', i))
        e(f"v_dot2_f32_bf16 v{32 + 2 * i}, v{16 + 4 * i}, v4, 0")
        e(f"v_dot2_f32_bf16 v{33 + 2 * i}, v{16 + 4 * i}, v{16 + 4 * i}, 0")
        for j in range(1, 4):
            e(f"v_dot2_f32_bf16 v{32 + 2 * i}, v{16 + 4 * i + j}, v4, v{32 + 2 * i}")
            e(f"v_dot2_f32_bf16 v{33 + 2 * i}, v{16 + 4 * i + j}, v{16 + 4 * i + j}, v{33 + 2 * i}")
    for pat in ("quad_perm:[1,0,3,2]", "quad_perm:[2,3,0,1]", "row_half_mirror", "row_mirror"):
        for k in range(8):
            e(f"v_add_f32_dpp v{32 + k}, v{32 + k}, v{32 + k} {pat} row_mask:0xf bank_mask:0xf")
    for sw in ("v_permlane16_swap_b32", "v_permlane32_swap_b32"):
        for k in range(8):
            e(f"v_mov_b32 v{40 + k}, v{32 + k}")
        for k in range(8):
            e(f"{sw} v{32 + k}, v{40 + k}")
        for k in range(8):
            e(f"v_add_f32 v{32 + k}, v{32 + k}, v{40 + k}")
    for i in range(4):
        sm, sq = 32 + 2 * i, 33 + 2 * i
        e(f"v_mul_f32 v{sm}, 0x3b000000, v{sm}")
        e(f"v_mul_f32 v{sq}, 0x3b000000, v{sq}")
        e(f"v_fma_f32 v{sq}, -v{sm}, v{sm}, v{sq}")
        e(f"v_max_f32 v{sq}, 0, v{sq}")
        e(f"v_cvt_pk_bf16_f32 v{sm}, v{sm}, v{sq}")
        e(f"v_lshlrev_b32 v{56 + 2 * i}, 16, v{sm}")
        e(f"v_and_b32 v{sq}, 0xffff0000, v{sm}")
        e(f"v_add_f32 v{sq}, 0x3727c5ac, v{sq}")
        e(f"v_cvt_pk_bf16_f32 v{sq}, v{sq}, v{sq}")
        e(f"v_lshlrev_b32 v{sq}, 16, v{sq}")
        e(f"v_sqrt_f32 v{sq}, v{sq}")
        e(f"v_cvt_pk_bf16_f32 v{sq}, v{sq}, v{sq}")
        e(f"v_lshlrev_b32 v{sq}, 16, v{sq}")
        e(f"v_rcp_f32 v{52 + i}, v{sq}")
        e(f"v_fma_f32 v{sm}, -v{sq}, v{52 + i}, 1.0")
        e(f"v_fma_f32 v{52 + i}, v{sm}, v{52 + i}, v{52 + i}")
        e(f"v_sub_f32 v{48 + i}, 0, v{56 + 2 * i}")
        e(f"v_mov_b32 v{57 + 2 * i}, v{52 + i}")
    for i in range(4):
        for j in range(4):
            r = 16 + 4 * i + j
            e(f"v_dot2_f32_bf16 v{64 + 2 * j}, v{r}, v5, v{48 + i}")
            e(f"v_dot2_f32_bf16 v{65 + 2 * j}, v{r}, v6, v{48 + i}")
        for j in range(4):
            r = 16 + 4 * i + j
            e(f"v_cvt_pk_bf16_f32 v{r}, v{64 + 2 * j}, v{65 + 2 * j}")
        for j in range(4):
            r = 16 + 4 * i + j
            e(f"v_lshlrev_b32 v{64 + 2 * j}, 16, v{r}")
            e(f"v_and_b32 v{65 + 2 * j}, 0xffff0000, v{r}")
        for j in range(4):
            e(f"v_mul_f32 v{64 + 2 * j}, v{64 + 2 * j}, v{52 + i}")
            e(f"v_mul_f32 v{65 + 2 * j}, v{65 + 2 * j}, v{52 + i}")
        for j in range(4):
            r = 16 + 4 * i + j
            e(f"v_cvt_pk_bf16_f32 v{r}, v{64 + 2 * j}, v{65 + 2 * j}")
        e(f"buffer_store_dwordx4 {vr(16 + 4 * i, 4)}, v7, {sr(WSD, 4)}, 0 offen offset:{16 * i} {K0ST}", tag='o')
    e("s_lshl_b32 s4, s3, 3")
    e(f"s_add_u32 s4, s4, {WS_STATS}")
    e("v_mov_b32 v8, s4")
    e("s_mov_b64 exec, 1", defs=[('exec', 0)], uses=[])
    e(f"buffer_store_dwordx4 v[56:59], v8, {sr(WSD, 4)}, 0 offen", tag='o')
    e(f"buffer_store_dwordx4 v[60:63], v8, {sr(WSD, 4)}, 0 offen offset:16", tag='o')
    e("s_endpgm")
    a.label("K0_NOTLN")
    a.nop(2)
    e("s_cmp_ge_u32 s2, 256")
    e("s_cbranch_scc0 K0_GLU")
    e("s_sub_u32 s3, s2, 256")
    e("s_lshl_b32 s3, s3, 2")
    e(f"s_add_u32 s3, s3, s{sW}")
    e("v_lshlrev_b32 v3, 4, v1")
    e("s_lshl_b32 s4, s3, 11")
    e("s_mul_i32 s5, s3, 7168")
    for k, P in enumerate((P_BRE, P_BIM, P_CRE, P_CIM)):
        srd(a, SA, P, 524288)
        e(f"buffer_load_dwordx4 {vr(16 + 8 * k, 4)}, v3, {sr(SA, 4)}, s4 offen", tag='p')
        e(f"buffer_load_dwordx4 {vr(20 + 8 * k, 4)}, v3, {sr(SA, 4)}, s4 offen offset:1024", tag='p')
        a.nop(4)
    srd(a, SB, P_WD, 1835008)
    for k in range(7):
        e(f"s_add_u32 s6, s5, {1024 * k}")
        e(f"buffer_load_dwordx4 {vr(48 + 4 * (k & 3), 4)}, v3, {sr(SB, 4)}, s6 offen", tag='p')
    vm0(a)
    e("s_endpgm")
    a.label("K0_GLU")
    a.nop(2)
    if not JOBS & 2:
        e("s_endpgm")
    UPOFF = 14336
    e("s_sub_u32 s3, s2, 128")
    e("s_lshr_b32 s4, s3, 2")
    e("s_and_b32 s5, s3, 3")
    e(f"s_cmp_lt_u32 s{sW}, 2")
    e(f"s_cselect_b32 s{SA}, s{P_WG}, s{P_WU}")
    e(f"s_cselect_b32 s{SA + 1}, s{P_WG + 1}, s{P_WU + 1}")
    e(f"s_cselect_b32 s7, 0, {UPOFF}")
    e(f"s_and_b32 s{SA + 1}, s{SA + 1}, 0xffff")
    e(f"s_mov_b32 s{SA + 2}, 1835008")
    e(f"s_mov_b32 s{SA + 3}, 0x00020000")
    e(f"s_and_b32 s6, s{sW}, 1")
    e("s_mul_i32 s6, s6, 7")
    e("s_mul_i32 s20, s4, 57344")
    e("s_mul_i32 s21, s5, 896")
    e("s_add_u32 s20, s20, s21")
    e("s_movk_i32 s22, 1171")
    e("s_movk_i32 s23, 3584")
    for i in range(7):
        e(f"s_add_u32 s24, s6, {i}")
        e("s_lshl_b32 s25, s24, 6")
        e("v_add_u32 v3, s25, v1")
        e("v_mul_lo_u32 v4, v3, s22")
        e("v_lshrrev_b32 v4, 16, v4")
        e("v_mul_u32_u24 v5, 56, v4")
        e("v_sub_u32 v5, v3, v5")
        e("v_mul_lo_u32 v4, v4, s23")
        e("v_lshl_add_u32 v4, v5, 4, v4")
        e("s_lshl_b32 s25, s24, 10")
        e("s_add_u32 m0, s25, s7")
        e(f"buffer_load_dwordx4 v4, {sr(SA, 4)}, s20 offen lds", tag='d')
    e("v_lshrrev_b32 v7, 4, v1")
    e("v_and_b32 v8, 1, v7")
    e("v_lshrrev_b32 v9, 1, v7")
    e("v_bfe_u32 v10, v1, 2, 2")
    e("v_lshl_add_u32 v10, v9, 3, v10")
    e("v_mul_u32_u24 v10, 896, v10")
    e(f"v_mul_u32_u24 v8, {UPOFF}, v8")
    e("v_add_u32 v10, v10, v8")
    e("v_and_b32 v11, 1, v1")
    e("v_bfe_u32 v12, v1, 1, 1")
    e("v_lshl_add_u32 v10, v11, 4, v10")
    e("v_lshl_add_u32 v10, v12, 3, v10")
    e(f"s_mul_i32 s24, s{sW}, 224")
    e("v_add_u32 v10, s24, v10")
    e("s_lshl_b32 s24, s5, 2")
    e(f"s_add_u32 s24, s24, s{sW}")
    e("s_mul_i32 s24, s24, 294912")
    e("s_lshl_b32 s25, s4, 10")
    e("s_add_u32 s24, s24, s25")
    e(f"s_add_u32 s24, s24, {WS_W1}")
    e("v_lshlrev_b32 v11, 4, v1")
    e("v_add_u32 v11, s24, v11")
    vm0(a)
    e("s_barrier")
    for T in range(7):
        for h in range(2):
            e(f"ds_read_b64_tr_b16 {vr(16 + 4 * T + 2 * h, 2)}, v10 offset:{4 * h * 896 + 32 * T}", tag=('t', T))
    for T in range(7):
        a.wait_lg(tag=('t', T))
        e(f"s_mov_b32 s25, {32768 * T}")
        e(f"buffer_store_dwordx4 {vr(16 + 4 * T, 4)}, v11, {sr(WSD, 4)}, s25 offen {K0ST}", tag='o')
    e("s_endpgm")
    a.label("K0_END")
    e("s_endpgm")
    return a


K1_SCAN = 98304
SC_PITCH = 272
K1_AGGL = K1_SCAN + 128 * SC_PITCH
K1_JOB = K1_AGGL + 2048
K1_LDS = K1_JOB + 16384


def gen_k1_full():
    a = Asm()
    e = a.emit
    WSD, DBG, PLRE, PLIM, PLDT, AGG = 8, 12, 16, 20, 24, 28
    sR, sC, sW = 40, 41, 42
    TORD = [0, 1, 7, 8, 2, 3, 4, 5, 6]
    e("s_cmp_ge_u32 s2, 256")
    e("s_cbranch_scc1 K1_END")
    load_kernargs(a)
    e("v_and_b32 v1, 63, v0")
    e("v_lshrrev_b32 v2, 6, v0")
    e(f"v_readfirstlane_b32 s{sW}, v2")
    MAP = os.environ.get('K1MAP', '4x8')
    e("s_lshr_b32 s3, s2, 3")
    if MAP == '4x8':
        e("s_bfe_u32 s4, s2, 0x20001")
        e("s_lshl_b32 s4, s4, 2")
        e("s_and_b32 s5, s3, 3")
        e(f"s_add_u32 s{sR}, s4, s5")
        e("s_and_b32 s4, s2, 1")
        e("s_lshl_b32 s4, s4, 3")
        e("s_lshr_b32 s5, s3, 2")
        e(f"s_add_u32 s{sC}, s4, s5")
    elif MAP == '8x4':
        e("s_bfe_u32 s4, s2, 0x10002")
        e("s_lshl_b32 s4, s4, 3")
        e("s_and_b32 s5, s3, 7")
        e(f"s_add_u32 s{sR}, s4, s5")
        e("s_and_b32 s4, s2, 3")
        e("s_lshl_b32 s4, s4, 2")
        e("s_lshr_b32 s5, s3, 3")
        e(f"s_add_u32 s{sC}, s4, s5")
    elif MAP == '2x16':
        e("s_and_b32 s4, s2, 7")
        e("s_lshl_b32 s4, s4, 1")
        e("s_and_b32 s5, s3, 1")
        e(f"s_add_u32 s{sR}, s4, s5")
        e(f"s_lshr_b32 s{sC}, s3, 1")
    e("v_lshlrev_b32 v6, 4, v1")
    e("v_and_b32 v3, 31, v1")
    e("v_lshrrev_b32 v4, 5, v1")
    lgk0(a)
    st = Stamper(a, 95, "k1")
    st.stamp("start")
    st.rt(30)
    srd(a, WSD, P_WS, WS_SIZE)
    e(f"s_cmp_ge_u32 s{sW}, 4")
    e("s_cbranch_scc1 K1_COMPUTE")
    e(f"s_mul_i32 s43, s{sC}, 294912")
    e(f"s_lshl_b32 s44, s{sW}, 13")
    e("s_add_u32 s43, s43, s44")
    e(f"s_add_u32 s43, s43, {WS_W1}")

    BRE, BIM, SX, SY = 32, 36, 48, 52
    srd(a, BRE, P_BRE, 524288)
    srd(a, BIM, P_BIM, 524288)
    e(f"s_lshl_b32 s4, s{sC}, 5")
    e(f"s_lshl_b32 s5, s{sW}, 3")
    e("s_add_u32 s4, s4, s5")
    e("s_lshl_b32 s47, s4, 10")
    e(f"s_lshl_b32 s5, s{sW}, 2")
    for k in range(4):
        e(f"s_add_u32 s6, s5, {k}")
        e("s_and_b32 s6, s6, 7")
        e(f"v_xor_b32 v{88 + k}, s6, v1")
        e(f"v_lshlrev_b32 v{88 + k}, 4, v{88 + k}")

    def dma_tile(idx):
        T = TORD[idx]
        slot = idx % 3
        for i in range(8 if not (os.environ.get('K1EXP') == 'nodma' and idx >= 3) else 0):
            e(f"s_add_u32 m0, s44, {slot * 32768 + i * 1024}")
            if T >= 7:
                e(f"s_add_u32 s45, s47, {1024 * i}")
                e(f"buffer_load_dwordx4 v{88 + (i >> 1)}, {sr(BRE if T == 7 else BIM, 4)}, s45 offen lds", tag=('w', idx))
            else:
                e(f"s_add_u32 s45, s43, {T * 32768 + i * 1024}")
                e(f"buffer_load_dwordx4 v6, {sr(WSD, 4)}, s45 offen lds", tag=('w', idx))

    dma_tile(0)
    dma_tile(1)
    srd(a, DBG, P_DBG, 256)
    srd(a, PLRE, P_LRE, 1024)
    srd(a, PLIM, P_LIM, 1024)
    srd(a, PLDT, P_LDT, 1024)
    e(f"s_lshl_b32 s4, s{sC}, 5")
    e("v_add_u32 v7, s4, v3")
    e("v_lshlrev_b32 v7, 1, v7")
    e(f"buffer_load_ushort v24, v7, {sr(PLRE, 4)}, 0 offen", tag='par')
    e(f"buffer_load_ushort v25, v7, {sr(PLIM, 4)}, 0 offen", tag='par')
    e(f"buffer_load_ushort v26, v7, {sr(PLDT, 4)}, 0 offen", tag='par')
    e(f"s_lshl_b32 s3, s{sC}, 12")
    e(f"s_add_u32 s3, s3, {WS_AGG}")
    srd_off(a, AGG, P_WS, 3, 4096)
    RAW = 32
    GA = 64

    def bar(idx):
        if idx == 1:
            return
        a.wait_vm(tag=('w', idx))
        if idx == 0:
            a.wait_vm(tag=('w', 1))
        a.wait_lg(n=0)
        e("s_barrier")
        if idx == 0:
            dma_tile(2)
        elif idx == 2:
            dma_tile(3)
            dma_tile(4)
        elif idx + 2 < 9:
            dma_tile(idx + 2)

    bar(0)
    a.wait_vm(tag='par')
    for t in ("v_lshlrev_b32 v24, 16, v24", "v_lshlrev_b32 v25, 16, v25", "v_lshlrev_b32 v26, 16, v26",
              f"v_mul_f32 v26, {LOG2E:#x}, v26", "v_exp_f32 v26, v26", "v_cvt_pk_bf16_f32 v26, v26, v26",
              "v_lshlrev_b32 v26, 16, v26", "v_mul_f32 v8, v26, v24", "v_mul_f32 v9, v26, v25",
              f"v_mul_f32 v8, {LOG2E:#x}, v8", "v_exp_f32 v8, v8", f"v_mul_f32 v9, {INV2PI:#x}, v9",
              "v_fract_f32 v9, v9", "v_cos_f32 v10, v9", "v_sin_f32 v11, v9",
              "v_mul_f32 v10, v8, v10", "v_mul_f32 v11, v8, v11",
              "v_add_f32 v12, -1.0, v10", "v_mul_f32 v13, v24, v24", "v_fma_f32 v13, v25, v25, v13",
              "v_rcp_f32 v14, v13", "v_fma_f32 v15, -v13, v14, 1.0", "v_fma_f32 v14, v15, v14, v14",
              "v_add_f32 v14, v14, v14", "v_mul_f32 v15, v12, v24", "v_fma_f32 v15, v11, v25, v15",
              "v_mul_f32 v16, v11, v24", "v_fma_f32 v16, -v12, v25, v16",
              "v_mul_f32 v12, v15, v14", "v_mul_f32 v13, v16, v14"):
        e(t)

    def csq(dr, di, sr_, si_):
        for t in (f"v_mul_f32 v18, v{si_}, v{si_}", f"v_mul_f32 v19, v{sr_}, v{si_}",
                  f"v_fma_f32 v{dr}, v{sr_}, v{sr_}, -v18", f"v_add_f32 v{di}, v19, v19"):
            e(t)
    csq(14, 15, 10, 11)
    for _ in range(3):
        csq(14, 15, 14, 15)
    csq(16, 17, 14, 15)
    csq(16, 17, 16, 17)
    csq(16, 17, 16, 17)
    for t in (f"s_lshl_b32 s3, s{sW}, 1", "v_add_u32 v20, s3, v4",
              f"v_mul_u32_u24 v21, {16 * SC_PITCH}, v20", "v_lshl_add_u32 v21, v3, 2, v21",
              f"v_add_u32 v21, {K1_SCAN}, v21",
              "v_lshlrev_b32 v22, 8, v20", "v_lshl_add_u32 v22, v3, 3, v22", f"v_add_u32 v22, {K1_AGGL}, v22",
              "v_lshlrev_b32 v23, 3, v3", f"v_add_u32 v23, {K1_AGGL}, v23"):
        e(t)
    bar(1)
    bar(2)
    bar(3)
    bar(4)
    bar(5)
    for i in range(16):
        e(f"ds_read_b32 v{RAW + i}, v21 offset:{i * SC_PITCH}", tag=('s', i))
        e(f"ds_read_b32 v{RAW + 16 + i}, v21 offset:{i * SC_PITCH + 128}", tag=('s', i))
    for i in range(1, 16):
        r, im, pr, pi = RAW + i, RAW + 16 + i, RAW + i - 1, RAW + 15 + i
        a.wait_lg(tag=('s', i))
        e(f"v_fma_f32 v{r}, v10, v{pr}, v{r}")
        e(f"v_fma_f32 v{im}, v10, v{pi}, v{im}")
        e(f"v_fma_f32 v{r}, -v11, v{pi}, v{r}")
        e(f"v_fma_f32 v{im}, v11, v{pr}, v{im}")
    e(f"v_mov_b32 v28, v{RAW + 15}")
    e(f"v_mov_b32 v29, v{RAW + 31}")
    e("ds_write_b64 v22, v[28:29]", tag='w')
    bar(6)
    for j in range(7):
        e(f"ds_read_b64 {vr(GA + 2 * j, 2)}, v23 offset:{256 * j}", tag=('g', j))
    for t in ("v_mov_b32 v24, 0", "v_mov_b32 v25, 0", "v_mov_b32 v26, 1.0", "v_mov_b32 v27, 0"):
        e(t)
    for j in range(7):
        gr, gi = GA + 2 * j, GA + 1 + 2 * j
        a.wait_lg(tag=('g', j))
        e(f"v_cmp_lt_u32 vcc, {j}, v20")
        for t in (f"v_fma_f32 v{gr}, v14, v24, v{gr}", f"v_fma_f32 v{gi}, v14, v25, v{gi}",
                  f"v_fma_f32 v{gr}, -v15, v25, v{gr}", f"v_fma_f32 v{gi}, v15, v24, v{gi}",
                  "v_mul_f32 v28, v14, v26", "v_mul_f32 v29, v14, v27",
                  "v_fma_f32 v28, -v15, v27, v28", "v_fma_f32 v29, v15, v26, v29",
                  f"v_cndmask_b32 v24, v24, v{gr}, vcc", f"v_cndmask_b32 v25, v25, v{gi}, vcc",
                  "v_cndmask_b32 v26, v26, v28, vcc", "v_cndmask_b32 v27, v27, v29, vcc"):
            e(t)
    for t in (f"v_fma_f32 v28, v14, v24, v{RAW + 15}", f"v_fma_f32 v29, v14, v25, v{RAW + 31}",
              "v_fma_f32 v28, -v15, v25, v28", "v_fma_f32 v29, v15, v24, v29",
              f"s_lshl_b32 s3, s{sR}, 8", "v_lshl_add_u32 v30, v3, 3, s3",
              f"s_lshl_b32 s4, s{sC}, 2", "v_mov_b32 v31, s4",
              f"s_lshl_b32 s5, 1, s{sR}", "v_mov_b32 v7, s5"):
        e(t)
    e("v_or_b32 v28, 1, v28")
    e(f"s_cmp_eq_u32 s{sW}, 3")
    e("s_cbranch_scc0 K1_NOPUB")
    e("s_mov_b32 exec_lo, 0", defs=[('exec', 0)], uses=[])
    e(f"buffer_store_dwordx2 v[28:29], v30, {sr(AGG, 4)}, 0 offen sc0 sc1", tag='pub')
    e("s_mov_b64 exec, -1", defs=[('exec', 0)], uses=[])
    a.label("K1_NOPUB")
    a.nop(2)
    a.vm = [t for t in a.vm if t != 'pub']
    bar(7)
    e("s_lshl_b32 s56, s2, 2")
    e(f"s_add_u32 s56, s56, s{sW}")
    e(f"s_lshl_b32 s57, s{sW}, 12")
    e(f"s_add_u32 s57, s57, {K1_JOB}")
    e("s_cmp_ge_u32 s56, 448")
    e("s_cbranch_scc1 K1_JOBC")
    srd(a, SX, P_WD, 1835008)
    e("s_lshr_b32 s4, s56, 3")
    e("s_and_b32 s5, s56, 7")
    e("s_lshl_b32 s6, s4, 15")
    e("s_lshl_b32 s7, s5, 7")
    e("s_add_u32 s6, s6, s7")
    e("v_lshrrev_b32 v28, 3, v1")
    e("v_lshlrev_b32 v28, 10, v28")
    e("v_and_b32 v29, 7, v1")
    e("v_lshl_add_u32 v28, v29, 4, v28")
    for i in range(4):
        e(f"s_add_u32 m0, s57, {1024 * i}")
        e(f"s_add_u32 s20, s6, {8192 * i}")
        e(f"buffer_load_dwordx4 v28, {sr(SX, 4)}, s20 offen lds", tag='job')
    e("s_mul_i32 s58, s5, 88")
    e("s_add_u32 s58, s58, s4")
    e("s_add_u32 s58, s58, 32")
    e("s_lshl_b32 s58, s58, 12")
    e(f"s_add_u32 s58, s58, {WS_W2}")
    e("s_branch K1_JOBISSUED")
    a.label("K1_JOBC")
    a.nop(2)
    e("s_cmp_ge_u32 s56, 960")
    e("s_cbranch_scc1 K1_JOBISSUED")
    e("s_sub_u32 s3, s56, 448")
    e("s_lshr_b32 s4, s3, 6")
    e("s_bfe_u32 s5, s3, 0x40002")
    e("s_bfe_u32 s6, s3, 0x10001")
    e("s_and_b32 s7, s3, 1")
    e("s_cmp_eq_u32 s6, 0")
    e(f"s_cselect_b32 s{SX}, s{P_CRE}, s{P_CIM}")
    e(f"s_cselect_b32 s{SX + 1}, s{P_CRE + 1}, s{P_CIM + 1}")
    e(f"s_and_b32 s{SX + 1}, s{SX + 1}, 0xffff")
    e(f"s_mov_b32 s{SX + 2}, 524288")
    e(f"s_mov_b32 s{SX + 3}, 0x00020000")
    e("s_lshl_b32 s20, s4, 6")
    e("s_lshl_b32 s21, s7, 5")
    e("s_add_u32 s20, s20, s21")
    e("v_and_b32 v28, 15, v1")
    e("v_add_u32 v28, s20, v28")
    e("v_lshlrev_b32 v28, 10, v28")
    e("v_lshrrev_b32 v29, 4, v1")
    e("v_lshl_add_u32 v28, v29, 4, v28")
    e("s_lshl_b32 s20, s5, 6")
    e("s_add_u32 s21, s20, 16384")
    e("s_mov_b32 m0, s57")
    e(f"buffer_load_dwordx4 v28, {sr(SX, 4)}, s20 offen lds", tag='job')
    e("s_add_u32 m0, s57, 1024")
    e(f"buffer_load_dwordx4 v28, {sr(SX, 4)}, s21 offen lds", tag='job')
    e("s_mul_i32 s58, s4, 88")
    e("s_lshl_b32 s21, s5, 1")
    e("s_add_u32 s58, s58, s21")
    e("s_add_u32 s58, s58, s6")
    e("s_lshl_b32 s58, s58, 12")
    e("s_lshl_b32 s21, s7, 11")
    e("s_add_u32 s58, s58, s21")
    e(f"s_add_u32 s58, s58, {WS_W2}")
    a.label("K1_JOBISSUED")
    a.nop(2)
    a.vm = [t for t in a.vm if t != 'job']
    for i in range(16):
        r, im = RAW + i, RAW + 16 + i
        for t in (f"v_mul_f32 v28, v12, v{r}", f"v_mul_f32 v29, v12, v{im}",
                  f"v_fma_f32 v28, -v13, v{im}, v28", f"v_fma_f32 v{im}, -v13, v{r}, -v29", f"v_mov_b32 v{r}, v28"):
            e(t)
    bar(8)
    if int(os.environ.get('K1LPRIO', '0')):
        e(f"s_setprio {int(os.environ.get('K1LPRIO'))}")
    st.stamp("L bar8")
    e("v_lshlrev_b32 v30, 3, v3")
    for t in (f"s_lshl_b32 s3, s{sR}, 1", "s_mul_i32 s3, s3, 88", f"s_lshl_b32 s4, s{sC}, 1", "s_add_u32 s3, s3, s4",
              "s_lshl_b32 s3, s3, 12", f"s_add_u32 s3, s3, {WS_AF}",
              "v_lshrrev_b32 v2, 2, v20", "v_mul_u32_u24 v2, 88, v2", "v_and_b32 v31, 1, v3",
              "v_add_u32 v2, v2, v31", "v_lshlrev_b32 v2, 12, v2", "v_add_u32 v2, s3, v2",
              "v_and_b32 v7, 3, v20", "v_lshl_add_u32 v2, v7, 10, v2",
              "v_lshrrev_b32 v7, 3, v3", "v_lshl_add_u32 v2, v7, 8, v2",
              "v_and_b32 v7, 6, v3", "v_lshl_add_u32 v2, v7, 1, v2",
              "v_cmp_eq_u32 vcc, 1, v31", "v_mov_b32 v28, 0", "v_mov_b32 v29, 0"):
        e(t)
    a.label("K1_POLL")
    a.nop(2)
    for i in range(15):
        e(f"buffer_load_dwordx2 {vr(GA + 2 * i, 2)}, v30, {sr(AGG, 4)}, 0 offen offset:{256 * i} sc0 sc1", tag=('c', i))
    e("v_mov_b32 v7, 1")
    vm0(a)
    for i in range(15):
        e(f"s_cmp_le_u32 s{sR}, {i}")
        e("s_cbranch_scc1 K1_CHKDONE")
        e(f"v_and_b32 v7, v7, v{GA + 2 * i}")
    a.label("K1_CHKDONE")
    a.nop(2)
    e("v_cmp_eq_u32 s[6:7], 1, v7")
    e("s_cmp_eq_u64 s[6:7], -1")
    e("s_cbranch_scc1 K1_POLLDONE")
    e("s_sleep 2")
    e("s_branch K1_POLL")
    a.label("K1_POLLDONE")
    a.nop(2)
    st.stamp("L polled")
    for i in range(15):
        e(f"s_cmp_le_u32 s{sR}, {i}")
        e("s_cbranch_scc1 K1_CARRYDONE")
        gr, gi = GA + 2 * i, GA + 1 + 2 * i
        e(f"v_fma_f32 v{gr}, v16, v28, v{gr}")
        e(f"v_fma_f32 v{gi}, v16, v29, v{gi}")
        e(f"v_fma_f32 v{gr}, -v17, v29, v{gr}")
        e(f"v_fma_f32 v{gi}, v17, v28, v{gi}")
        e(f"v_mov_b32 v28, v{gr}")
        e(f"v_mov_b32 v29, v{gi}")
    a.label("K1_CARRYDONE")
    a.nop(2)
    for t in ("v_fma_f32 v24, v26, v28, v24", "v_fma_f32 v25, v26, v29, v25",
              "v_fma_f32 v24, -v27, v29, v24", "v_fma_f32 v25, v27, v28, v25",
              "v_mul_f32 v26, v12, v24", "v_mul_f32 v27, v12, v25",
              "v_fma_f32 v26, -v13, v25, v26", "v_fma_f32 v27, v13, v24, v27"):
        e(t)
    vm0(a)
    e("s_cmp_ge_u32 s56, 448")
    e("s_cbranch_scc1 K1_JOBC2")
    e("v_lshrrev_b32 v28, 4, v1")
    e("v_bfe_u32 v29, v1, 2, 2")
    e("v_lshl_add_u32 v28, v28, 3, v29")
    e("v_lshlrev_b32 v28, 7, v28")
    e("v_and_b32 v29, 3, v1")
    e("v_lshl_add_u32 v28, v29, 3, v28")
    e("v_add_u32 v28, s57, v28")
    for mt in range(4):
        for h in range(2):
            e(f"ds_read_b64_tr_b16 {vr(GA + 4 * mt + 2 * h, 2)}, v28 offset:{512 * h + 32 * mt}", tag=('jt', mt))
    for mt in range(4):
        a.wait_lg(tag=('jt', mt))
        e(f"buffer_store_dwordx4 {vr(GA + 4 * mt, 4)}, v6, {sr(WSD, 4)}, s58 offen offset:{1024 * mt}", tag='jo')
    e("s_branch K1_JOBDONE")
    a.label("K1_JOBC2")
    a.nop(2)
    e("s_cmp_ge_u32 s56, 960")
    e("s_cbranch_scc1 K1_JOBDONE")
    e("v_add_u32 v28, s57, v6")
    e(f"ds_read_b128 {vr(GA, 4)}, v28", tag='jt')
    e(f"ds_read_b128 {vr(GA + 4, 4)}, v28 offset:1024", tag='jt')
    a.wait_lg(n=0)
    e(f"buffer_store_dwordx4 {vr(GA, 4)}, v6, {sr(WSD, 4)}, s58 offen", tag='jo')
    e(f"buffer_store_dwordx4 {vr(GA + 4, 4)}, v6, {sr(WSD, 4)}, s58 offen offset:1024", tag='jo')
    a.label("K1_JOBDONE")
    a.nop(2)
    for i in range(16):
        r, im = RAW + i, RAW + 16 + i
        fr, fi, nr, ni = (26, 27, 24, 25) if i % 2 == 0 else (24, 25, 26, 27)
        for t in (f"v_mul_f32 v{nr}, v10, v{fr}", f"v_mul_f32 v{ni}, v10, v{fi}",
                  f"v_fma_f32 v{nr}, -v11, v{fi}, v{nr}", f"v_fma_f32 v{ni}, v11, v{fr}, v{ni}",
                  f"v_add_f32 v{r}, v{r}, v{nr}", f"v_sub_f32 v{im}, v{im}, v{ni}",
                  f"v_cndmask_b32 v28, v{im}, v{r}, vcc",
                  "v_mov_b32_dpp v29, v28 quad_perm:[1,0,3,2] row_mask:0xf bank_mask:0xf",
                  f"v_cndmask_b32 v28, v{r}, v29, vcc", f"v_cndmask_b32 v29, v29, v{im}, vcc",
                  f"v_cvt_pk_bf16_f32 v{r}, v28, v29"):
            e(t)
        e(f"buffer_store_dword v{r}, v2, {sr(WSD, 4)}, 0 offen offset:{16 * i}", tag='hs')
    st.stamp("L end")
    st.dump(WSD, WS_STAMP, 2, shift=11)
    e("s_endpgm")

    a.label("K1_COMPUTE")
    a.nop(4)
    a.vm = []
    a.lg = []
    st.n = 1
    if int(os.environ.get('K1PRIO', '0')):
        e(f"s_setprio {int(os.environ.get('K1PRIO'))}")
    e(f"s_sub_u32 s{sW}, s{sW}, 4")
    e(f"s_lshl_b32 s3, s{sR}, 2")
    e(f"s_add_u32 s3, s3, s{sW}")
    e("s_lshl_b32 s3, s3, 15")
    if WS_XF:
        e(f"s_add_u32 s3, s3, {WS_XF}")
    for s in range(32):
        if s % 4 == 0:
            e(f"s_add_u32 s4, s3, {1024 * s}")
        e(f"buffer_load_dwordx4 {ar(32 + 4 * s, 4)}, v6, {sr(WSD, 4)}, s4 offen offset:{1024 * (s % 4)}", tag=('x', s))
    TOUCH = int(os.environ.get('K1TOUCH', '3'))
    if TOUCH & 1:
        e(f"s_and_b32 s4, s{sW}, 1")
        e("s_cmp_eq_u32 s4, 0")
        e(f"s_cselect_b32 s48, s{P_BRE}, s{P_BIM}")
        e(f"s_cselect_b32 s49, s{P_BRE + 1}, s{P_BIM + 1}")
        e("s_and_b32 s49, s49, 0xffff")
        e("s_mov_b32 s50, 524288")
        e("s_mov_b32 s51, 0x00020000")
        e(f"s_lshl_b32 s4, s{sC}, 5")
        e(f"s_lshl_b32 s5, s{sR}, 1")
        e("s_add_u32 s4, s4, s5")
        e(f"s_lshr_b32 s5, s{sW}, 1")
        e("s_add_u32 s4, s4, s5")
        e("s_lshl_b32 s4, s4, 10")
        e("buffer_load_dwordx4 v[92:95], v6, s[48:51], s4 offen", tag='touch')

    def touch_job():
        e("s_lshl_b32 s56, s2, 2")
        e(f"s_add_u32 s56, s56, s{sW}")
        e("s_cmp_ge_u32 s56, 448")
        e("s_cbranch_scc1 K1_TJC")
        srd(a, 48, P_WD, 1835008)
        e("s_lshr_b32 s4, s56, 3")
        e("s_and_b32 s5, s56, 7")
        e("s_lshl_b32 s6, s4, 15")
        e("s_lshl_b32 s7, s5, 7")
        e("s_add_u32 s6, s6, s7")
        e("v_lshrrev_b32 v9, 3, v1")
        e("v_lshlrev_b32 v9, 10, v9")
        e("v_and_b32 v10, 7, v1")
        e("v_lshl_add_u32 v9, v10, 4, v9")
        for i in range(4):
            e(f"s_add_u32 s20, s6, {8192 * i}")
            e("buffer_load_dwordx4 v[92:95], v9, s[48:51], s20 offen", tag='touch')
        e("s_branch K1_TJD")
        a.label("K1_TJC")
        a.nop(2)
        e("s_cmp_ge_u32 s56, 960")
        e("s_cbranch_scc1 K1_TJD")
        e("s_sub_u32 s3, s56, 448")
        e("s_lshr_b32 s4, s3, 6")
        e("s_bfe_u32 s5, s3, 0x40002")
        e("s_bfe_u32 s6, s3, 0x10001")
        e("s_and_b32 s7, s3, 1")
        e("s_cmp_eq_u32 s6, 0")
        e(f"s_cselect_b32 s48, s{P_CRE}, s{P_CIM}")
        e(f"s_cselect_b32 s49, s{P_CRE + 1}, s{P_CIM + 1}")
        e("s_and_b32 s49, s49, 0xffff")
        e("s_mov_b32 s50, 524288")
        e("s_mov_b32 s51, 0x00020000")
        e("s_lshl_b32 s20, s4, 6")
        e("s_lshl_b32 s21, s7, 5")
        e("s_add_u32 s20, s20, s21")
        e("v_and_b32 v9, 15, v1")
        e("v_add_u32 v9, s20, v9")
        e("v_lshlrev_b32 v9, 10, v9")
        e("v_lshrrev_b32 v10, 4, v1")
        e("v_lshl_add_u32 v9, v10, 4, v9")
        e("s_lshl_b32 s20, s5, 6")
        e("s_add_u32 s21, s20, 16384")
        e("buffer_load_dwordx4 v[92:95], v9, s[48:51], s20 offen", tag='touch')
        e("buffer_load_dwordx4 v[92:95], v9, s[48:51], s21 offen", tag='touch')
        a.label("K1_TJD")
        a.nop(2)

    e(f"v_add_u32 v5, 0x10000, v6")
    for t in (f"s_lshl_b32 s3, s{sW}, 5", "v_add_u32 v7, s3, v3", f"v_mul_u32_u24 v7, {SC_PITCH}, v7",
              "v_lshl_add_u32 v7, v4, 4, v7", f"v_add_u32 v7, {K1_SCAN}, v7",
              f"s_lshl_b32 s3, s{sR}, 1", f"s_lshr_b32 s4, s{sW}, 1", "s_add_u32 s3, s3, s4",
              "s_mul_i32 s3, s3, 88", "s_add_u32 s3, s3, 32", "s_lshl_b32 s3, s3, 12",
              f"s_and_b32 s4, s{sW}, 1", "s_lshl_b32 s4, s4, 11", "s_add_u32 s3, s3, s4",
              f"s_add_u32 s3, s3, {WS_AF}",
              "v_lshrrev_b32 v2, 4, v3", "v_lshlrev_b32 v2, 10, v2", "v_and_b32 v8, 15, v3",
              "v_lshl_add_u32 v2, v8, 4, v2", "v_add_u32 v2, s3, v2",
              f"s_mul_i32 s46, s{sC}, 14", "v_add_u32 v8, s46, v4"):
        e(t)
    e("v_bfe_u32 v9, v3, 1, 3")
    e("v_lshlrev_b32 v10, 10, v3")
    for k in range(4):
        e(f"v_add_u32 v11, {2 * k}, v4")
        e("v_xor_b32 v11, v11, v9")
        e("v_lshl_add_u32 v11, v11, 4, v10")
        e(f"v_add_u32 v{84 + k}, {32768 * (TORD.index(7) % 3)}, v11")
        e(f"v_add_u32 v{88 + k}, {32768 * (TORD.index(8) % 3)}, v11")
    ACC = [32, 48]
    D = int(os.environ.get('K1D', '5'))
    RING = 8

    def ops_dump(acc, part):
        return [(lambda j=j: e(f"ds_write_b128 v7, {vr(acc + 4 * j, 4)} offset:{part * 128 + j * 32}", tag='w')) for j in range(4)]

    def ops_glu(acc, T):
        g, u = acc, acc + 8
        o = 64 + 4 * (T & 1)
        t0 = 72
        L = []
        w = L.append
        for p in range(4):
            w(lambda p=p: e(f"v_cvt_pk_bf16_f32 v{t0 + p}, v{g + 2 * p}, v{g + 2 * p + 1}"))
            w(lambda p=p: e(f"v_cvt_pk_bf16_f32 v{t0 + 4 + p}, v{u + 2 * p}, v{u + 2 * p + 1}"))
        for p in range(4):
            w(lambda p=p: e(f"v_lshlrev_b32 v{g + 2 * p}, 16, v{t0 + p}"))
            w(lambda p=p: e(f"v_and_b32 v{g + 2 * p + 1}, 0xffff0000, v{t0 + p}"))
        for i in range(8):
            w(lambda i=i: e(f"v_mul_f32 v{g + i}, {NLOG2E:#x}, v{g + i}"))
        for i in range(8):
            w(lambda i=i: e(f"v_exp_f32 v{g + i}, v{g + i}"))
            p = i // 2
            if i % 2 == 0:
                w(lambda p=p: e(f"v_lshlrev_b32 v{u + 2 * p}, 16, v{t0 + 4 + p}"))
            else:
                w(lambda p=p: e(f"v_and_b32 v{u + 2 * p + 1}, 0xffff0000, v{t0 + 4 + p}"))
        for i in range(8):
            w(lambda i=i: e(f"v_add_f32 v{g + i}, 1.0, v{g + i}"))
        for i in range(8):
            w(lambda i=i: e(f"v_rcp_f32 v{g + i}, v{g + i}"))
        w(lambda: e(f"v_add_u32 v80, {2 * T}, v8"))
        w(lambda: e("v_lshrrev_b32 v81, 2, v80"))
        w(lambda: e("v_and_b32 v80, 3, v80"))
        w(lambda: e("v_lshl_add_u32 v81, v81, 12, v2"))
        w(lambda: e(f"v_lshl_add_u32 v{82 + (T & 1)}, v80, 8, v81"))
        for p in range(4):
            w(lambda p=p: e(f"v_cvt_pk_bf16_f32 v{t0 + p}, v{g + 2 * p}, v{g + 2 * p + 1}"))
        for p in range(4):
            w(lambda p=p: e(f"v_lshlrev_b32 v{g + 2 * p}, 16, v{t0 + p}"))
            w(lambda p=p: e(f"v_and_b32 v{g + 2 * p + 1}, 0xffff0000, v{t0 + p}"))
        for i in range(8):
            w(lambda i=i: e(f"v_mul_f32 v{g + i}, v{g + i}, v{u + i}"))
        for p in range(4):
            w(lambda p=p: e(f"v_cvt_pk_bf16_f32 v{o + p}, v{g + 2 * p}, v{g + 2 * p + 1}"))
        SF = os.environ.get('K1ST', '')
        if SF != 'none':
            w(lambda: e(f"buffer_store_dwordx4 {vr(o, 4)}, v{82 + (T & 1)}, {sr(WSD, 4)}, 0 offen {SF}", tag='hg'))
        return L

    def frag(n):
        return ar(4 * (n % RING), 4)

    SEQ = []
    for s in range(32):
        SEQ += [(0, s), (1, s)]
    for idx in range(2, 9):
        SEQ += [(idx, s) for s in range(32)]
    NF = len(SEQ)
    ACC3 = {0: 32, 1: 48}
    for idx in range(2, 9):
        ACC3[idx] = 16 if idx == 2 else (32 if idx % 2 == 1 else 48)

    def issue_read(n):
        idx, s = SEQ[n]
        slot = idx % 3
        if s == 0 and idx != 1:
            e("s_barrier")
            st.stamp(f"barrier {idx}")
        base = 5 if slot == 2 else 6
        off = (slot & 1) * 32768 + s * 1024 if slot < 2 else s * 1024
        if TORD[idx] >= 7:
            base = (84 if TORD[idx] == 7 else 88) + (s & 3)
            off = (s >> 2) * 128
        e(f"ds_read_b128 {frag(n)}, v{base} offset:{off}", tag=('f', n))

    for n in range(D):
        issue_read(n)
    pend = []
    for n in range(NF):
        idx, s = SEQ[n]
        acc = ACC3[idx]
        if s == 0 and idx >= 2:
            assert not pend
            prevs = [0, 1] if idx == 2 else [idx - 1]
            for p in prevs[::-1]:
                pT = TORD[p]
                pend += ops_dump(ACC3[p], pT - 7) if pT >= 7 else ops_glu(ACC3[p], pT)
        if idx == 0:
            a.wait_vm(tag=('x', s))
        if idx == int(os.environ.get('K1TJ', '3')) and s == 1 and TOUCH & 2:
            touch_job()
        a.wait_lg(tag=('f', n))
        c = "0" if s == 0 else vr(acc, 16)
        e(f"v_mfma_f32_32x32x16_bf16 {vr(acc, 16)}, {frag(n)}, {ar(32 + 4 * s, 4)}, {c}")
        if s >= 2 and idx >= 2:
            rem = max(1, (32 - D) - s)
            k = (len(pend) + rem - 1) // rem if pend else 0
            for _ in range(k):
                if pend:
                    pend.pop(0)()
        if n + D < NF:
            if SEQ[n + D][1] == 0 and SEQ[n + D][0] >= 2:
                assert not pend
                a.wait_lg(tag='w')
            issue_read(n + D)
    st.stamp("main end")
    for op in ops_glu(ACC3[8], TORD[8]):
        op()
    st.stamp("end")
    st.rt(31)
    st.dump(WSD, WS_STAMP, 2, shift=11)
    a.label("K1_END")
    e("s_endpgm")
    return a


K2_LDS = 131072
ROT = int(os.environ.get('K2ROT', '1'))
K2_START = [0, 11, 22, 32, 44, 55, 66, 77]
K2_CNT = [11, 11, 10, 12, 11, 11, 11, 11]


def gen_k2():
    a = Asm()
    e = a.emit
    WSD, XS, DSK, OUT = 8, 24, 28, 32
    sRB, sCB, sW = 40, 41, 42
    e("s_cmp_ge_u32 s2, 256")
    e("s_cbranch_scc1 K2_END")
    load_kernargs(a)
    e("v_and_b32 v1, 63, v0")
    e("v_lshrrev_b32 v2, 6, v0")
    e(f"v_readfirstlane_b32 s{sW}, v2")
    e("s_and_b32 s3, s2, 7")
    e("s_lshr_b32 s4, s2, 3")
    e(f"s_and_b32 s{sCB}, s4, 7")
    e("s_lshr_b32 s4, s4, 3")
    e("s_lshl_b32 s3, s3, 2")
    e(f"s_add_u32 s{sRB}, s3, s4")
    e("v_lshlrev_b32 v6, 4, v1")
    e(f"s_mul_i32 s44, s{sRB}, {88 * 4096}")
    e(f"s_add_u32 s44, s44, {WS_AF}")
    e(f"s_mul_i32 s45, s{sCB}, {88 * 4096}")
    e(f"s_add_u32 s45, s45, {WS_W2}")
    e(f"s_lshl_b32 s3, s{sW}, 15")
    e("s_add_u32 s46, s44, s3")
    e("s_add_u32 s47, s45, s3")
    e(f"s_mul_i32 s3, s{sW}, {14 * 4096}")
    e(f"s_add_u32 s3, s3, {32 * 4096}")
    e("s_add_u32 s48, s44, s3")
    e("s_add_u32 s49, s45, s3")
    lgk0(a)
    st = Stamper(a, 31, "k2")
    st.stamp("start")
    st.rt(30)
    srd(a, WSD, P_WS, WS_SIZE)
    NBUF = int(os.environ.get("K2NB", "11"))
    NSTEP = 22

    def buf(n, off):
        b = n % NBUF
        return vr(32 + 32 * b + off, 4) if b < 5 else ar(128 + 32 * (b - 5) + off, 4)

    def issue_loads(n):
        sa, sw, j = (46, 47, n) if n < 8 else (48, 49, n - 8)
        e(f"s_add_u32 s7, s{sw}, {4096 * j}")
        e(f"s_add_u32 s20, s{sa}, {4096 * j}")
        for t in range(4):
            e(f"buffer_load_dwordx4 {buf(n, 4 * t)}, v6, {sr(WSD, 4)}, s7 offen offset:{1024 * t}", tag=('l', n))
            e(f"buffer_load_dwordx4 {buf(n, 16 + 4 * t)}, v6, {sr(WSD, 4)}, s20 offen offset:{1024 * t}", tag=('l', n))

    PF = min(NBUF - 1, 7)
    for n in range(PF):
        issue_loads(n)
    srd(a, XS, P_X, 2097152)
    srd(a, DSK, P_DSK, 1024)
    srd(a, OUT, P_OUT, 4194304)
    e("v_and_b32 v3, 15, v1")
    e("v_lshrrev_b32 v4, 4, v1")
    e(f"s_lshl_b32 s3, s{sRB}, 6")
    e(f"s_lshl_b32 s4, s{sW}, 4")
    e("s_add_u32 s3, s3, s4")
    e("v_add_u32 v8, s3, v3")
    e(f"s_lshl_b32 s4, s{sCB}, 6")
    e("v_lshl_add_u32 v14, v4, 2, s4")
    e("v_lshlrev_b32 v11, 10, v8")
    e("v_lshl_add_u32 v11, v14, 1, v11")
    e("v_lshlrev_b32 v12, 1, v14")
    e("v_lshlrev_b32 v13, 3, v8")
    e(f"v_add_u32 v13, {WS_STATS}, v13")
    e(f"s_lshl_b32 s3, s{sW}, 12")
    e("v_add_u32 v9, s3, v6")
    e("v_add_u32 v10, 0x10000, v9")
    e(f"s_lshl_b32 s3, s{sW}, 14")
    e("v_add_u32 v15, s3, v6")
    e("v_add_u32 v16, 0x10000, v15")
    XR, DR, SR_ = 192 + 32, 192 + 40, 192 + 48
    YS = 192

    def epi_loads():
        for mt in range(4):
            e(f"buffer_load_dwordx2 {vr(XR + 2 * mt, 2)}, v11, {sr(XS, 4)}, 0 offen offset:{32 * mt}", tag='e')
            e(f"buffer_load_dwordx2 {vr(DR + 2 * mt, 2)}, v12, {sr(DSK, 4)}, 0 offen offset:{32 * mt}", tag='e')
        e(f"buffer_load_dwordx2 {vr(SR_, 2)}, v13, {sr(WSD, 4)}, 0 offen", tag='e')

    def write_part(accb, base):
        for nt in range(4):
            for mt in range(4):
                e(f"ds_write_b128 v{base}, {ar(accb + 16 * nt + 4 * mt, 4)} offset:{nt * 16384 + mt * 1024}", tag='w')

    def read_sum(base, dst):
        for mt in range(4):
            e(f"ds_read_b128 {vr(dst + 4 * mt, 4)}, v{base} offset:{mt * 1024}", tag=('r', 0))
        for sidx in range(1, 4):
            for mt in range(4):
                t = 244 + 4 * (mt % 3)
                e(f"ds_read_b128 {vr(t, 4)}, v{base} offset:{sidx * 4096 + mt * 1024}", tag=('r', sidx, mt))
                a.wait_lg(tag=('r', sidx, mt))
                for i in range(4):
                    e(f"v_add_f32 v{dst + 4 * mt + i}, v{dst + 4 * mt + i}, v{t + i}")

    nxt = PF
    for n in range(NSTEP):
        while nxt < NSTEP and nxt <= n + NBUF - 1 and len(a.vm) + 8 <= 63:
            issue_loads(nxt)
            nxt += 1
        if n == 0:
            epi_loads()
        if n == 12:
            for m in range(4):
                for p in range(2):
                    xr, dr = XR + 2 * m + p, DR + 2 * m + p
                    y0, y1 = YS + 4 * m + 2 * p, YS + 1 + 4 * m + 2 * p
                    x0, x1 = YS + 16 + 4 * m + 2 * p, YS + 17 + 4 * m + 2 * p
                    for t in (f"v_lshlrev_b32 v{x0}, 16, v{xr}", f"v_and_b32 v{x1}, 0xffff0000, v{xr}",
                              f"v_sub_f32 v244, v{x0}, v{SR_}", f"v_sub_f32 v245, v{x1}, v{SR_}", "v_cvt_pk_bf16_f32 v246, v244, v245",
                              "v_lshlrev_b32 v244, 16, v246", "v_and_b32 v245, 0xffff0000, v246",
                              f"v_mul_f32 v244, v244, v{SR_ + 1}", f"v_mul_f32 v245, v245, v{SR_ + 1}", "v_cvt_pk_bf16_f32 v246, v244, v245",
                              "v_lshlrev_b32 v244, 16, v246", "v_and_b32 v245, 0xffff0000, v246",
                              f"v_lshlrev_b32 v247, 16, v{dr}", f"v_and_b32 v248, 0xffff0000, v{dr}",
                              "v_mul_f32 v244, v244, v247", "v_mul_f32 v245, v245, v248", "v_cvt_pk_bf16_f32 v246, v244, v245",
                              f"v_lshlrev_b32 v{y0}, 16, v246", f"v_and_b32 v{y1}, 0xffff0000, v246"):
                        e(t)
        if n == 10:
            write_part(0, 9)
        a.wait_vm(tag=('l', n))
        if n % 2 == 0:
            st.stamp(f"step {n}")
        accb = 0 if n < 8 else 64
        for nt in range(4):
            for mt in range(4):
                d = accb + 16 * nt + 4 * mt
                c = "0" if n in (0, 8) else ar(d, 4)
                e(f"v_mfma_f32_16x16x32_bf16 {ar(d, 4)}, {buf(n, 4 * mt)}, {buf(n, 16 + 4 * nt)}, {c}")
    st.stamp("main end")
    write_part(64, 10)
    e("v_lshlrev_b32 v11, 1, v11")
    a.wait_lg(n=0)
    e("s_barrier")
    DS = 32
    for sidx in range(4):
        for mt in range(4):
            e(f"ds_read_b128 {vr(DS + 16 * sidx + 4 * mt, 4)}, v16 offset:{sidx * 4096 + mt * 1024}", tag=('r', sidx))
    for sidx in range(4):
        for mt in range(4):
            e(f"ds_read_b128 {vr(128 + 16 * sidx + 4 * mt, 4)}, v15 offset:{sidx * 4096 + mt * 1024}", tag=('ry', sidx))
    a.wait_lg(tag=('r', 1))
    for i in range(16):
        e(f"v_add_f32 v{DS + i}, v{DS + i}, v{DS + 16 + i}")
    a.wait_lg(tag=('r', 3))
    for i in range(16):
        e(f"v_add_f32 v{DS + 32 + i}, v{DS + 32 + i}, v{DS + 48 + i}")
    for i in range(16):
        e(f"v_add_f32 v{DS + i}, v{DS + i}, v{DS + 32 + i}")
    st.stamp("reduced")
    T0, T1 = 96, 112
    for p in range(8):
        e(f"v_cvt_pk_bf16_f32 v{T0 + p}, v{DS + 2 * p}, v{DS + 2 * p + 1}")
    for p in range(8):
        e(f"v_lshlrev_b32 v{DS + 2 * p}, 16, v{T0 + p}")
        e(f"v_and_b32 v{DS + 2 * p + 1}, 0xffff0000, v{T0 + p}")
    for i in range(16):
        e(f"v_mul_f32 v{T1 + i}, {NLOG2E:#x}, v{DS + i}")
    for i in range(16):
        e(f"v_exp_f32 v{T1 + i}, v{T1 + i}")
    for i in range(16):
        e(f"v_add_f32 v{T1 + i}, 1.0, v{T1 + i}")
    for i in range(16):
        e(f"v_rcp_f32 v{T1 + i}, v{T1 + i}")
    for i in range(16):
        e(f"v_mul_f32 v{T1 + i}, v{DS + i}, v{T1 + i}")
    for p in range(8):
        e(f"v_cvt_pk_bf16_f32 v{T0 + p}, v{T1 + 2 * p}, v{T1 + 2 * p + 1}")
    for p in range(8):
        e(f"v_lshlrev_b32 v{DS + 2 * p}, 16, v{T0 + p}")
        e(f"v_and_b32 v{DS + 2 * p + 1}, 0xffff0000, v{T0 + p}")
    a.wait_lg(n=0)
    for i in range(16):
        e(f"v_add_f32 v{128 + i}, v{128 + i}, v{144 + i}")
    for i in range(16):
        e(f"v_add_f32 v{160 + i}, v{160 + i}, v{176 + i}")
    for i in range(16):
        e(f"v_add_f32 v{128 + i}, v{128 + i}, v{160 + i}")
    for i in range(16):
        e(f"v_add_f32 v{YS + i}, v{128 + i}, v{YS + i}")
    for i in range(16):
        e(f"v_mul_f32 v{DS + i}, v{YS + i}, v{DS + i}")
    for i in range(16):
        e(f"v_add_f32 v{DS + i}, v{YS + 16 + i}, v{DS + i}")
    for m in range(4):
        e(f"buffer_store_dwordx4 {vr(DS + 4 * m, 4)}, v11, {sr(OUT, 4)}, 0 offen offset:{64 * m}", tag='o')
    st.stamp("end")
    st.rt(31)
    st.dump(WSD, WS_STAMP + 0x100000, 2, shift=11)
    a.label("K2_END")
    e("s_endpgm")
    return a


def kd(name, nfv, acc):
    return f""".p2align 6
.amdhsa_kernel {name}
  .amdhsa_next_free_vgpr {nfv}
  .amdhsa_next_free_sgpr 102
  .amdhsa_accum_offset {acc}
  .amdhsa_group_segment_fixed_size 0
  .amdhsa_kernarg_size 128
  .amdhsa_user_sgpr_count 2
  .amdhsa_user_sgpr_kernarg_segment_ptr 1
  .amdhsa_system_sgpr_workgroup_id_x 1
  .amdhsa_float_denorm_mode_32 3
  .amdhsa_float_denorm_mode_16_64 3
.end_amdhsa_kernel
"""


def main():
    k0 = gen_k0()
    k1 = gen_k1_full()
    k2 = gen_k2()
    out = []
    out.append(f"; @launch kernel=ssm_k0_kernel grid=({K0_GRID},1,1) block=(256,1,1) lds={K0_LDS}")
    out.append(f"; @launch kernel=ssm_k1_kernel grid=(256,1,1) block=(512,1,1) lds={K1_LDS}")
    out.append(f"; @launch kernel=ssm_k2_kernel grid=(256,1,1) block=(256,1,1) lds={K2_LDS}")
    out.append('.amdgcn_target "amdgcn-amd-amdhsa--gfx950"')
    out.append(".text")
    for nm, k in (("ssm_k0_kernel", k0), ("ssm_k1_kernel", k1), ("ssm_k2_kernel", k2)):
        out.append(f".globl {nm}")
        out.append(".p2align 8")
        out.append(f".type {nm},@function")
        out.append(f"{nm}:")
        out.append(k.text())
    out.append('.section .rodata,"a"')
    out.append(kd("ssm_k0_kernel", 72, 72))
    out.append(kd("ssm_k1_kernel", 256, 96))
    out.append(kd("ssm_k2_kernel", 512, 256))
    txt = "\n".join(out)
    path = sys.argv[1] if len(sys.argv) > 1 else f"cdna_kernels/{NAME}.s"
    open(path, "w").write(txt)
    for nm, k in (("k0", k0), ("k1", k1), ("k2", k2)):
        print(nm, "lines", len(k.lines), "nops", k.nops)


if __name__ == "__main__":
    main()
```

```python
import sys, os
from asmlib import *

NAME = "recurrent_scan__ssm_conv_s5__glu_gated_glu__prompt"
WS_XF = 0x000000
WS_W1 = 0x200000
WS_W2 = 0x700000
WS_AF = 0xA00000
WS_STATS = 0x1500000
WS_AGG = 0x1510000
WS_STAMP = 0x1600000
WS_SIZE = 0x2000000

LOG2E = 0x3FB8AA3B
NLOG2E = 0xBFB8AA3B
INV2PI = 0x3E22F983

STAMP = int(os.environ.get('KSTAMP', '0'))
K0ST = os.environ.get('K0ST', '')
JST = os.environ.get('JST', '')

P_X, P_LRE, P_LIM, P_BRE, P_BIM, P_CRE, P_CIM, P_LDT = 64, 66, 68, 70, 72, 74, 76, 78
P_DSK, P_BX, P_WG, P_WU, P_WD, P_OUT, P_DBG, P_WS = 80, 82, 84, 86, 88, 90, 92, 94


class Stamper:
    def __init__(self, a, vreg, name):
        self.a = a; self.v = vreg; self.n = 0; self.name = name

    def stamp(self, name):
        if not STAMP:
            return
        a = self.a
        a.raw("s_memtime s[100:101]")
        a.raw("s_waitcnt lgkmcnt(0)")
        a.pos += 2
        a.lg = []
        a.emit(f"v_writelane_b32 v{self.v}, s100, {self.n}", defs=[('v', self.v)], uses=[])
        print("stamp", self.name, self.n, name)
        self.n += 1

    def rt(self, slot):
        if not STAMP:
            return
        a = self.a
        a.raw("s_memrealtime s[100:101]")
        a.raw("s_waitcnt lgkmcnt(0)")
        a.pos += 2
        a.lg = []
        a.emit(f"v_writelane_b32 v{self.v}, s100, {slot}", defs=[('v', self.v)], uses=[])

    def dump(self, wsd, base, tmp, shift=10):
        if not STAMP:
            return
        a = self.a
        a.emit(f"v_lshlrev_b32 v{tmp}, 2, v0")
        a.emit(f"s_lshl_b32 s100, s2, {shift}")
        a.emit(f"s_add_u32 s100, s100, {base}")
        a.emit(f"v_add_u32 v{tmp}, s100, v{tmp}")
        a.emit(f"buffer_store_dword v{self.v}, v{tmp}, {sr(wsd, 4)}, 0 offen", tag='stamp')


def srd(a, d, base, size):
    a.emit(f"s_mov_b32 s{d}, s{base}")
    a.emit(f"s_and_b32 s{d + 1}, s{base + 1}, 0xffff")
    a.emit(f"s_mov_b32 s{d + 2}, {size}")
    a.emit(f"s_mov_b32 s{d + 3}, 0x00020000")


def srd_off(a, d, base, soff, size):
    a.emit(f"s_add_u32 s{d}, s{base}, s{soff}")
    a.emit(f"s_addc_u32 s{d + 1}, s{base + 1}, 0")
    a.emit(f"s_and_b32 s{d + 1}, s{d + 1}, 0xffff")
    a.emit(f"s_mov_b32 s{d + 2}, {size}")
    a.emit(f"s_mov_b32 s{d + 3}, 0x00020000")


def load_kernargs(a):
    a.raw("s_load_dwordx16 s[64:79], s[0:1], 0")
    a.raw("s_load_dwordx16 s[80:95], s[0:1], 64")
    a.pos += 2


def lgk0(a):
    a.raw("s_waitcnt lgkmcnt(0)")
    a.pos += 1
    a.lg = []


def vm0(a):
    a.raw("s_waitcnt vmcnt(0)")
    a.pos += 1
    a.vm = []


K0_LDS = 32768
K0_GRID = 256 + 64 * int(os.environ.get("K0WARM", "1"))


def gen_k0():
    a = Asm()
    e = a.emit
    WSD, SA, SB = 8, 12, 16
    sW = 42
    e(f"s_cmp_ge_u32 s2, {K0_GRID}")
    e("s_cbranch_scc1 K0_END")
    load_kernargs(a)
    e("v_and_b32 v1, 63, v0")
    e("v_lshrrev_b32 v2, 6, v0")
    e(f"v_readfirstlane_b32 s{sW}, v2")
    lgk0(a)
    srd(a, WSD, P_WS, WS_SIZE)
    e("s_cmp_ge_u32 s2, 256")
    e("s_cbranch_scc1 K0_NOZERO")
    e(f"s_cmp_eq_u32 s{sW}, 0")
    e("s_cbranch_scc0 K0_NOZERO")
    e("s_lshl_b32 s3, s2, 8")
    e(f"s_add_u32 s3, s3, {WS_AGG}")
    e("v_lshlrev_b32 v3, 2, v1")
    e("v_mov_b32 v4, 0")
    e(f"buffer_store_dword v4, v3, {sr(WSD, 4)}, s3 offen", tag='z')
    e("s_cmp_ge_u32 s2, 32")
    e("s_cbranch_scc1 K0_NOZERO")
    e("s_add_u32 s3, s3, 0x10000")
    e(f"buffer_store_dword v4, v3, {sr(WSD, 4)}, s3 offen", tag='z')
    a.label("K0_NOZERO")
    a.nop(2)
    a.vm = []
    if int(os.environ.get('K0SWAP', '0')):
        e("s_xor_b32 s2, s2, 128")
    e("s_cmp_ge_u32 s2, 128")
    e("s_cbranch_scc1 K0_NOTLN")
    JOBS = int(os.environ.get('K0JOBS', '31'))
    if not JOBS & 1:
        e("s_endpgm")
    srd(a, SA, P_X, 2097152)
    e("s_lshl_b32 s3, s2, 4")
    e(f"s_lshl_b32 s4, s{sW}, 2")
    e("s_add_u32 s3, s3, s4")
    e("s_lshl_b32 s4, s3, 10")
    e("v_lshlrev_b32 v3, 4, v1")
    e("v_add_u32 v3, s4, v3")
    for i in range(4):
        e(f"buffer_load_dwordx4 {vr(16 + 4 * i, 4)}, v3, {sr(SA, 4)}, 0 offen offset:{1024 * i}", tag=('x', i))
    e("v_mov_b32 v4, 0x3f803f80")
    e("v_mov_b32 v5, 0x00003f80")
    e("v_mov_b32 v6, 0x3f800000")
    e("s_lshr_b32 s5, s3, 5")
    e("s_lshl_b32 s5, s5, 15")
    e("s_and_b32 s6, s3, 31")
    e("s_lshl_b32 s6, s6, 4")
    e("s_add_u32 s5, s5, s6")
    e("v_lshrrev_b32 v7, 1, v1")
    e("v_lshlrev_b32 v7, 10, v7")
    e("v_and_b32 v8, 1, v1")
    e("v_lshl_add_u32 v7, v8, 9, v7")
    e("v_add_u32 v7, s5, v7")
    if WS_XF:
        e(f"v_add_u32 v7, {WS_XF}, v7")
    for i in range(4):
        a.wait_vm(tag=('x', i))
        e(f"v_dot2_f32_bf16 v{32 + 2 * i}, v{16 + 4 * i}, v4, 0")
        e(f"v_dot2_f32_bf16 v{33 + 2 * i}, v{16 + 4 * i}, v{16 + 4 * i}, 0")
        for j in range(1, 4):
            e(f"v_dot2_f32_bf16 v{32 + 2 * i}, v{16 + 4 * i + j}, v4, v{32 + 2 * i}")
            e(f"v_dot2_f32_bf16 v{33 + 2 * i}, v{16 + 4 * i + j}, v{16 + 4 * i + j}, v{33 + 2 * i}")
    for pat in ("quad_perm:[1,0,3,2]", "quad_perm:[2,3,0,1]", "row_half_mirror", "row_mirror"):
        for k in range(8):
            e(f"v_add_f32_dpp v{32 + k}, v{32 + k}, v{32 + k} {pat} row_mask:0xf bank_mask:0xf")
    for sw in ("v_permlane16_swap_b32", "v_permlane32_swap_b32"):
        for k in range(8):
            e(f"v_mov_b32 v{40 + k}, v{32 + k}")
        for k in range(8):
            e(f"{sw} v{32 + k}, v{40 + k}")
        for k in range(8):
            e(f"v_add_f32 v{32 + k}, v{32 + k}, v{40 + k}")
    for i in range(4):
        sm, sq = 32 + 2 * i, 33 + 2 * i
        e(f"v_mul_f32 v{sm}, 0x3b000000, v{sm}")
        e(f"v_mul_f32 v{sq}, 0x3b000000, v{sq}")
        e(f"v_fma_f32 v{sq}, -v{sm}, v{sm}, v{sq}")
        e(f"v_max_f32 v{sq}, 0, v{sq}")
        e(f"v_cvt_pk_bf16_f32 v{sm}, v{sm}, v{sq}")
        e(f"v_lshlrev_b32 v{56 + 2 * i}, 16, v{sm}")
        e(f"v_and_b32 v{sq}, 0xffff0000, v{sm}")
        e(f"v_add_f32 v{sq}, 0x3727c5ac, v{sq}")
        e(f"v_cvt_pk_bf16_f32 v{sq}, v{sq}, v{sq}")
        e(f"v_lshlrev_b32 v{sq}, 16, v{sq}")
        e(f"v_sqrt_f32 v{sq}, v{sq}")
        e(f"v_cvt_pk_bf16_f32 v{sq}, v{sq}, v{sq}")
        e(f"v_lshlrev_b32 v{sq}, 16, v{sq}")
        e(f"v_rcp_f32 v{52 + i}, v{sq}")
        e(f"v_fma_f32 v{sm}, -v{sq}, v{52 + i}, 1.0")
        e(f"v_fma_f32 v{52 + i}, v{sm}, v{52 + i}, v{52 + i}")
        e(f"v_sub_f32 v{48 + i}, 0, v{56 + 2 * i}")
        e(f"v_mov_b32 v{57 + 2 * i}, v{52 + i}")
    for i in range(4):
        for j in range(4):
            r = 16 + 4 * i + j
            e(f"v_dot2_f32_bf16 v{64 + 2 * j}, v{r}, v5, v{48 + i}")
            e(f"v_dot2_f32_bf16 v{65 + 2 * j}, v{r}, v6, v{48 + i}")
        for j in range(4):
            r = 16 + 4 * i + j
            e(f"v_cvt_pk_bf16_f32 v{r}, v{64 + 2 * j}, v{65 + 2 * j}")
        for j in range(4):
            r = 16 + 4 * i + j
            e(f"v_lshlrev_b32 v{64 + 2 * j}, 16, v{r}")
            e(f"v_and_b32 v{65 + 2 * j}, 0xffff0000, v{r}")
        for j in range(4):
            e(f"v_mul_f32 v{64 + 2 * j}, v{64 + 2 * j}, v{52 + i}")
            e(f"v_mul_f32 v{65 + 2 * j}, v{65 + 2 * j}, v{52 + i}")
        for j in range(4):
            r = 16 + 4 * i + j
            e(f"v_cvt_pk_bf16_f32 v{r}, v{64 + 2 * j}, v{65 + 2 * j}")
        e(f"buffer_store_dwordx4 {vr(16 + 4 * i, 4)}, v7, {sr(WSD, 4)}, 0 offen offset:{16 * i} {K0ST}", tag='o')
    e("s_lshl_b32 s4, s3, 3")
    e(f"s_add_u32 s4, s4, {WS_STATS}")
    e("v_mov_b32 v8, s4")
    e("s_mov_b64 exec, 1", defs=[('exec', 0)], uses=[])
    e(f"buffer_store_dwordx4 v[56:59], v8, {sr(WSD, 4)}, 0 offen", tag='o')
    e(f"buffer_store_dwordx4 v[60:63], v8, {sr(WSD, 4)}, 0 offen offset:16", tag='o')
    e("s_endpgm")
    a.label("K0_NOTLN")
    a.nop(2)
    e("s_cmp_ge_u32 s2, 256")
    e("s_cbranch_scc0 K0_GLU")
    e("s_sub_u32 s3, s2, 256")
    e("s_lshl_b32 s3, s3, 2")
    e(f"s_add_u32 s3, s3, s{sW}")
    e("v_lshlrev_b32 v3, 4, v1")
    e("s_lshl_b32 s4, s3, 11")
    e("s_mul_i32 s5, s3, 7168")
    for k, P in enumerate((P_BRE, P_BIM, P_CRE, P_CIM)):
        srd(a, SA, P, 524288)
        e(f"buffer_load_dwordx4 {vr(16 + 8 * k, 4)}, v3, {sr(SA, 4)}, s4 offen", tag='p')
        e(f"buffer_load_dwordx4 {vr(20 + 8 * k, 4)}, v3, {sr(SA, 4)}, s4 offen offset:1024", tag='p')
        a.nop(4)
    srd(a, SB, P_WD, 1835008)
    for k in range(7):
        e(f"s_add_u32 s6, s5, {1024 * k}")
        e(f"buffer_load_dwordx4 {vr(48 + 4 * (k & 3), 4)}, v3, {sr(SB, 4)}, s6 offen", tag='p')
    vm0(a)
    e("s_endpgm")
    a.label("K0_GLU")
    a.nop(2)
    if not JOBS & 2:
        e("s_endpgm")
    UPOFF = 14336
    e("s_sub_u32 s3, s2, 128")
    e("s_lshr_b32 s4, s3, 2")
    e("s_and_b32 s5, s3, 3")
    e(f"s_cmp_lt_u32 s{sW}, 2")
    e(f"s_cselect_b32 s{SA}, s{P_WG}, s{P_WU}")
    e(f"s_cselect_b32 s{SA + 1}, s{P_WG + 1}, s{P_WU + 1}")
    e(f"s_cselect_b32 s7, 0, {UPOFF}")
    e(f"s_and_b32 s{SA + 1}, s{SA + 1}, 0xffff")
    e(f"s_mov_b32 s{SA + 2}, 1835008")
    e(f"s_mov_b32 s{SA + 3}, 0x00020000")
    e(f"s_and_b32 s6, s{sW}, 1")
    e("s_mul_i32 s6, s6, 7")
    e("s_mul_i32 s20, s4, 57344")
    e("s_mul_i32 s21, s5, 896")
    e("s_add_u32 s20, s20, s21")
    e("s_movk_i32 s22, 1171")
    e("s_movk_i32 s23, 3584")
    for i in range(7):
        e(f"s_add_u32 s24, s6, {i}")
        e("s_lshl_b32 s25, s24, 6")
        e("v_add_u32 v3, s25, v1")
        e("v_mul_lo_u32 v4, v3, s22")
        e("v_lshrrev_b32 v4, 16, v4")
        e("v_mul_u32_u24 v5, 56, v4")
        e("v_sub_u32 v5, v3, v5")
        e("v_mul_lo_u32 v4, v4, s23")
        e("v_lshl_add_u32 v4, v5, 4, v4")
        e("s_lshl_b32 s25, s24, 10")
        e("s_add_u32 m0, s25, s7")
        e(f"buffer_load_dwordx4 v4, {sr(SA, 4)}, s20 offen lds", tag='d')
    e("v_lshrrev_b32 v7, 4, v1")
    e("v_and_b32 v8, 1, v7")
    e("v_lshrrev_b32 v9, 1, v7")
    e("v_bfe_u32 v10, v1, 2, 2")
    e("v_lshl_add_u32 v10, v9, 3, v10")
    e("v_mul_u32_u24 v10, 896, v10")
    e(f"v_mul_u32_u24 v8, {UPOFF}, v8")
    e("v_add_u32 v10, v10, v8")
    e("v_and_b32 v11, 1, v1")
    e("v_bfe_u32 v12, v1, 1, 1")
    e("v_lshl_add_u32 v10, v11, 4, v10")
    e("v_lshl_add_u32 v10, v12, 3, v10")
    e(f"s_mul_i32 s24, s{sW}, 224")
    e("v_add_u32 v10, s24, v10")
    e("s_lshl_b32 s24, s5, 2")
    e(f"s_add_u32 s24, s24, s{sW}")
    e("s_mul_i32 s24, s24, 294912")
    e("s_lshl_b32 s25, s4, 10")
    e("s_add_u32 s24, s24, s25")
    e(f"s_add_u32 s24, s24, {WS_W1}")
    e("v_lshlrev_b32 v11, 4, v1")
    e("v_add_u32 v11, s24, v11")
    vm0(a)
    e("s_barrier")
    for T in range(7):
        for h in range(2):
            e(f"ds_read_b64_tr_b16 {vr(16 + 4 * T + 2 * h, 2)}, v10 offset:{4 * h * 896 + 32 * T}", tag=('t', T))
    for T in range(7):
        a.wait_lg(tag=('t', T))
        e(f"s_mov_b32 s25, {32768 * T}")
        e(f"buffer_store_dwordx4 {vr(16 + 4 * T, 4)}, v11, {sr(WSD, 4)}, s25 offen {K0ST}", tag='o')
    e("s_endpgm")
    a.label("K0_END")
    e("s_endpgm")
    return a


K1_SCAN = 98304
SC_PITCH = 272
K1_AGGL = K1_SCAN + 128 * SC_PITCH
K1_JOB = K1_AGGL + 2048
K1_LDS = K1_JOB + 16384


def gen_k1_full():
    a = Asm()
    e = a.emit
    WSD, DBG, PLRE, PLIM, PLDT, AGG = 8, 12, 16, 20, 24, 28
    sR, sC, sW = 40, 41, 42
    TORD = [0, 1, 7, 8, 2, 3, 4, 5, 6]
    e("s_cmp_ge_u32 s2, 256")
    e("s_cbranch_scc1 K1_END")
    load_kernargs(a)
    e("v_and_b32 v1, 63, v0")
    e("v_lshrrev_b32 v2, 6, v0")
    e(f"v_readfirstlane_b32 s{sW}, v2")
    MAP = os.environ.get('K1MAP', '4x8')
    e("s_lshr_b32 s3, s2, 3")
    if MAP == '4x8':
        e("s_bfe_u32 s4, s2, 0x20001")
        e("s_lshl_b32 s4, s4, 2")
        e("s_and_b32 s5, s3, 3")
        e(f"s_add_u32 s{sR}, s4, s5")
        e("s_and_b32 s4, s2, 1")
        e("s_lshl_b32 s4, s4, 3")
        e("s_lshr_b32 s5, s3, 2")
        e(f"s_add_u32 s{sC}, s4, s5")
    elif MAP == '8x4':
        e("s_bfe_u32 s4, s2, 0x10002")
        e("s_lshl_b32 s4, s4, 3")
        e("s_and_b32 s5, s3, 7")
        e(f"s_add_u32 s{sR}, s4, s5")
        e("s_and_b32 s4, s2, 3")
        e("s_lshl_b32 s4, s4, 2")
        e("s_lshr_b32 s5, s3, 3")
        e(f"s_add_u32 s{sC}, s4, s5")
    elif MAP == '2x16':
        e("s_and_b32 s4, s2, 7")
        e("s_lshl_b32 s4, s4, 1")
        e("s_and_b32 s5, s3, 1")
        e(f"s_add_u32 s{sR}, s4, s5")
        e(f"s_lshr_b32 s{sC}, s3, 1")
    e("v_lshlrev_b32 v6, 4, v1")
    e("v_and_b32 v3, 31, v1")
    e("v_lshrrev_b32 v4, 5, v1")
    lgk0(a)
    st = Stamper(a, 95, "k1")
    st.stamp("start")
    st.rt(30)
    srd(a, WSD, P_WS, WS_SIZE)
    e(f"s_cmp_ge_u32 s{sW}, 4")
    e("s_cbranch_scc1 K1_COMPUTE")
    e(f"s_mul_i32 s43, s{sC}, 294912")
    e(f"s_lshl_b32 s44, s{sW}, 13")
    e("s_add_u32 s43, s43, s44")
    e(f"s_add_u32 s43, s43, {WS_W1}")

    BRE, BIM, SX, SY = 32, 36, 48, 52
    srd(a, BRE, P_BRE, 524288)
    srd(a, BIM, P_BIM, 524288)
    e(f"s_lshl_b32 s4, s{sC}, 5")
    e(f"s_lshl_b32 s5, s{sW}, 3")
    e("s_add_u32 s4, s4, s5")
    e("s_lshl_b32 s47, s4, 10")
    e(f"s_lshl_b32 s5, s{sW}, 2")
    for k in range(4):
        e(f"s_add_u32 s6, s5, {k}")
        e("s_and_b32 s6, s6, 7")
        e(f"v_xor_b32 v{88 + k}, s6, v1")
        e(f"v_lshlrev_b32 v{88 + k}, 4, v{88 + k}")

    def dma_tile(idx):
        T = TORD[idx]
        slot = idx % 3
        for i in range(8 if not (os.environ.get('K1EXP') == 'nodma' and idx >= 3) else 0):
            e(f"s_add_u32 m0, s44, {slot * 32768 + i * 1024}")
            if T >= 7:
                e(f"s_add_u32 s45, s47, {1024 * i}")
                e(f"buffer_load_dwordx4 v{88 + (i >> 1)}, {sr(BRE if T == 7 else BIM, 4)}, s45 offen lds", tag=('w', idx))
            else:
                e(f"s_add_u32 s45, s43, {T * 32768 + i * 1024}")
                e(f"buffer_load_dwordx4 v6, {sr(WSD, 4)}, s45 offen lds", tag=('w', idx))

    dma_tile(0)
    dma_tile(1)
    srd(a, DBG, P_DBG, 256)
    srd(a, PLRE, P_LRE, 1024)
    srd(a, PLIM, P_LIM, 1024)
    srd(a, PLDT, P_LDT, 1024)
    e(f"s_lshl_b32 s4, s{sC}, 5")
    e("v_add_u32 v7, s4, v3")
    e("v_lshlrev_b32 v7, 1, v7")
    e(f"buffer_load_ushort v24, v7, {sr(PLRE, 4)}, 0 offen", tag='par')
    e(f"buffer_load_ushort v25, v7, {sr(PLIM, 4)}, 0 offen", tag='par')
    e(f"buffer_load_ushort v26, v7, {sr(PLDT, 4)}, 0 offen", tag='par')
    e(f"s_lshl_b32 s3, s{sC}, 12")
    e(f"s_add_u32 s3, s3, {WS_AGG}")
    srd_off(a, AGG, P_WS, 3, 4096)
    RAW = 32
    GA = 64

    def bar(idx):
        if idx == 1:
            return
        a.wait_vm(tag=('w', idx))
        if idx == 0:
            a.wait_vm(tag=('w', 1))
        a.wait_lg(n=0)
        e("s_barrier")
        if idx == 0:
            dma_tile(2)
        elif idx == 2:
            dma_tile(3)
            dma_tile(4)
        elif idx + 2 < 9:
            dma_tile(idx + 2)

    bar(0)
    a.wait_vm(tag='par')
    for t in ("v_lshlrev_b32 v24, 16, v24", "v_lshlrev_b32 v25, 16, v25", "v_lshlrev_b32 v26, 16, v26",
              f"v_mul_f32 v26, {LOG2E:#x}, v26", "v_exp_f32 v26, v26", "v_cvt_pk_bf16_f32 v26, v26, v26",
              "v_lshlrev_b32 v26, 16, v26", "v_mul_f32 v8, v26, v24", "v_mul_f32 v9, v26, v25",
              f"v_mul_f32 v8, {LOG2E:#x}, v8", "v_exp_f32 v8, v8", f"v_mul_f32 v9, {INV2PI:#x}, v9",
              "v_fract_f32 v9, v9", "v_cos_f32 v10, v9", "v_sin_f32 v11, v9",
              "v_mul_f32 v10, v8, v10", "v_mul_f32 v11, v8, v11",
              "v_add_f32 v12, -1.0, v10", "v_mul_f32 v13, v24, v24", "v_fma_f32 v13, v25, v25, v13",
              "v_rcp_f32 v14, v13", "v_fma_f32 v15, -v13, v14, 1.0", "v_fma_f32 v14, v15, v14, v14",
              "v_add_f32 v14, v14, v14", "v_mul_f32 v15, v12, v24", "v_fma_f32 v15, v11, v25, v15",
              "v_mul_f32 v16, v11, v24", "v_fma_f32 v16, -v12, v25, v16",
              "v_mul_f32 v12, v15, v14", "v_mul_f32 v13, v16, v14"):
        e(t)

    def csq(dr, di, sr_, si_):
        for t in (f"v_mul_f32 v18, v{si_}, v{si_}", f"v_mul_f32 v19, v{sr_}, v{si_}",
                  f"v_fma_f32 v{dr}, v{sr_}, v{sr_}, -v18", f"v_add_f32 v{di}, v19, v19"):
            e(t)
    csq(14, 15, 10, 11)
    for _ in range(3):
        csq(14, 15, 14, 15)
    csq(16, 17, 14, 15)
    csq(16, 17, 16, 17)
    csq(16, 17, 16, 17)
    for t in (f"s_lshl_b32 s3, s{sW}, 1", "v_add_u32 v20, s3, v4",
              f"v_mul_u32_u24 v21, {16 * SC_PITCH}, v20", "v_lshl_add_u32 v21, v3, 2, v21",
              f"v_add_u32 v21, {K1_SCAN}, v21",
              "v_lshlrev_b32 v22, 8, v20", "v_lshl_add_u32 v22, v3, 3, v22", f"v_add_u32 v22, {K1_AGGL}, v22",
              "v_lshlrev_b32 v23, 3, v3", f"v_add_u32 v23, {K1_AGGL}, v23"):
        e(t)
    bar(1)
    bar(2)
    bar(3)
    bar(4)
    bar(5)
    for i in range(16):
        e(f"ds_read_b32 v{RAW + i}, v21 offset:{i * SC_PITCH}", tag=('s', i))
        e(f"ds_read_b32 v{RAW + 16 + i}, v21 offset:{i * SC_PITCH + 128}", tag=('s', i))
    for i in range(1, 16):
        r, im, pr, pi = RAW + i, RAW + 16 + i, RAW + i - 1, RAW + 15 + i
        a.wait_lg(tag=('s', i))
        e(f"v_fma_f32 v{r}, v10, v{pr}, v{r}")
        e(f"v_fma_f32 v{im}, v10, v{pi}, v{im}")
        e(f"v_fma_f32 v{r}, -v11, v{pi}, v{r}")
        e(f"v_fma_f32 v{im}, v11, v{pr}, v{im}")
    e(f"v_mov_b32 v28, v{RAW + 15}")
    e(f"v_mov_b32 v29, v{RAW + 31}")
    e("ds_write_b64 v22, v[28:29]", tag='w')
    bar(6)
    for j in range(7):
        e(f"ds_read_b64 {vr(GA + 2 * j, 2)}, v23 offset:{256 * j}", tag=('g', j))
    for t in ("v_mov_b32 v24, 0", "v_mov_b32 v25, 0", "v_mov_b32 v26, 1.0", "v_mov_b32 v27, 0"):
        e(t)
    for j in range(7):
        gr, gi = GA + 2 * j, GA + 1 + 2 * j
        a.wait_lg(tag=('g', j))
        e(f"v_cmp_lt_u32 vcc, {j}, v20")
        for t in (f"v_fma_f32 v{gr}, v14, v24, v{gr}", f"v_fma_f32 v{gi}, v14, v25, v{gi}",
                  f"v_fma_f32 v{gr}, -v15, v25, v{gr}", f"v_fma_f32 v{gi}, v15, v24, v{gi}",
                  "v_mul_f32 v28, v14, v26", "v_mul_f32 v29, v14, v27",
                  "v_fma_f32 v28, -v15, v27, v28", "v_fma_f32 v29, v15, v26, v29",
                  f"v_cndmask_b32 v24, v24, v{gr}, vcc", f"v_cndmask_b32 v25, v25, v{gi}, vcc",
                  "v_cndmask_b32 v26, v26, v28, vcc", "v_cndmask_b32 v27, v27, v29, vcc"):
            e(t)
    for t in (f"v_fma_f32 v28, v14, v24, v{RAW + 15}", f"v_fma_f32 v29, v14, v25, v{RAW + 31}",
              "v_fma_f32 v28, -v15, v25, v28", "v_fma_f32 v29, v15, v24, v29",
              f"s_lshl_b32 s3, s{sR}, 8", "v_lshl_add_u32 v30, v3, 3, s3",
              f"s_lshl_b32 s4, s{sC}, 2", "v_mov_b32 v31, s4",
              f"s_lshl_b32 s5, 1, s{sR}", "v_mov_b32 v7, s5"):
        e(t)
    e("v_or_b32 v28, 1, v28")
    e(f"s_cmp_eq_u32 s{sW}, 3")
    e("s_cbranch_scc0 K1_NOPUB")
    e("s_mov_b32 exec_lo, 0", defs=[('exec', 0)], uses=[])
    e(f"buffer_store_dwordx2 v[28:29], v30, {sr(AGG, 4)}, 0 offen sc0 sc1", tag='pub')
    e("s_mov_b64 exec, -1", defs=[('exec', 0)], uses=[])
    a.label("K1_NOPUB")
    a.nop(2)
    a.vm = [t for t in a.vm if t != 'pub']
    bar(7)
    e("s_lshl_b32 s56, s2, 2")
    e(f"s_add_u32 s56, s56, s{sW}")
    e(f"s_lshl_b32 s57, s{sW}, 12")
    e(f"s_add_u32 s57, s57, {K1_JOB}")
    e("s_cmp_ge_u32 s56, 448")
    e("s_cbranch_scc1 K1_JOBC")
    srd(a, SX, P_WD, 1835008)
    e("s_lshr_b32 s4, s56, 3")
    e("s_and_b32 s5, s56, 7")
    e("s_lshl_b32 s6, s4, 15")
    e("s_lshl_b32 s7, s5, 7")
    e("s_add_u32 s6, s6, s7")
    e("v_lshrrev_b32 v28, 3, v1")
    e("v_lshlrev_b32 v28, 10, v28")
    e("v_and_b32 v29, 7, v1")
    e("v_lshl_add_u32 v28, v29, 4, v28")
    for i in range(4):
        e(f"s_add_u32 m0, s57, {1024 * i}")
        e(f"s_add_u32 s20, s6, {8192 * i}")
        e(f"buffer_load_dwordx4 v28, {sr(SX, 4)}, s20 offen lds", tag='job')
    e("s_mul_i32 s58, s5, 88")
    e("s_add_u32 s58, s58, s4")
    e("s_add_u32 s58, s58, 32")
    e("s_lshl_b32 s58, s58, 12")
    e(f"s_add_u32 s58, s58, {WS_W2}")
    e("s_branch K1_JOBISSUED")
    a.label("K1_JOBC")
    a.nop(2)
    e("s_cmp_ge_u32 s56, 960")
    e("s_cbranch_scc1 K1_JOBISSUED")
    e("s_sub_u32 s3, s56, 448")
    e("s_lshr_b32 s4, s3, 6")
    e("s_bfe_u32 s5, s3, 0x40002")
    e("s_bfe_u32 s6, s3, 0x10001")
    e("s_and_b32 s7, s3, 1")
    e("s_cmp_eq_u32 s6, 0")
    e(f"s_cselect_b32 s{SX}, s{P_CRE}, s{P_CIM}")
    e(f"s_cselect_b32 s{SX + 1}, s{P_CRE + 1}, s{P_CIM + 1}")
    e(f"s_and_b32 s{SX + 1}, s{SX + 1}, 0xffff")
    e(f"s_mov_b32 s{SX + 2}, 524288")
    e(f"s_mov_b32 s{SX + 3}, 0x00020000")
    e("s_lshl_b32 s20, s4, 6")
    e("s_lshl_b32 s21, s7, 5")
    e("s_add_u32 s20, s20, s21")
    e("v_and_b32 v28, 15, v1")
    e("v_add_u32 v28, s20, v28")
    e("v_lshlrev_b32 v28, 10, v28")
    e("v_lshrrev_b32 v29, 4, v1")
    e("v_lshl_add_u32 v28, v29, 4, v28")
    e("s_lshl_b32 s20, s5, 6")
    e("s_add_u32 s21, s20, 16384")
    e("s_mov_b32 m0, s57")
    e(f"buffer_load_dwordx4 v28, {sr(SX, 4)}, s20 offen lds", tag='job')
    e("s_add_u32 m0, s57, 1024")
    e(f"buffer_load_dwordx4 v28, {sr(SX, 4)}, s21 offen lds", tag='job')
    e("s_mul_i32 s58, s4, 88")
    e("s_lshl_b32 s21, s5, 1")
    e("s_add_u32 s58, s58, s21")
    e("s_add_u32 s58, s58, s6")
    e("s_lshl_b32 s58, s58, 12")
    e("s_lshl_b32 s21, s7, 11")
    e("s_add_u32 s58, s58, s21")
    e(f"s_add_u32 s58, s58, {WS_W2}")
    a.label("K1_JOBISSUED")
    a.nop(2)
    a.vm = [t for t in a.vm if t != 'job']
    for i in range(16):
        r, im = RAW + i, RAW + 16 + i
        for t in (f"v_mul_f32 v28, v12, v{r}", f"v_mul_f32 v29, v12, v{im}",
                  f"v_fma_f32 v28, -v13, v{im}, v28", f"v_fma_f32 v{im}, -v13, v{r}, -v29", f"v_mov_b32 v{r}, v28"):
            e(t)
    bar(8)
    if int(os.environ.get('K1LPRIO', '0')):
        e(f"s_setprio {int(os.environ.get('K1LPRIO'))}")
    st.stamp("L bar8")
    e("v_lshlrev_b32 v30, 3, v3")
    for t in (f"s_lshl_b32 s3, s{sW}, 12", f"s_add_u32 s3, s3, {K1_SCAN}",
              "v_lshlrev_b32 v2, 11, v4", "v_and_b32 v31, 1, v3", "v_lshl_add_u32 v2, v31, 6, v2",
              "v_lshrrev_b32 v7, 1, v3", "v_lshl_add_u32 v2, v7, 2, v2", "v_add_u32 v2, s3, v2",
              "v_add_u32 v5, s3, v6",
              f"s_lshl_b32 s3, s{sR}, 1", f"s_lshr_b32 s4, s{sW}, 1", "s_add_u32 s3, s3, s4", "s_mul_i32 s3, s3, 88",
              f"s_lshl_b32 s4, s{sC}, 1", "s_add_u32 s3, s3, s4", "s_lshl_b32 s3, s3, 12",
              f"s_and_b32 s4, s{sW}, 1", "s_lshl_b32 s4, s4, 11", "s_add_u32 s3, s3, s4", f"s_add_u32 s3, s3, {WS_AF}",
              "v_bfe_u32 v7, v1, 2, 1", "v_lshlrev_b32 v9, 12, v7", "v_and_b32 v7, 3, v1", "v_lshl_add_u32 v9, v7, 8, v9",
              "v_lshrrev_b32 v7, 3, v1", "v_lshl_add_u32 v9, v7, 4, v9", "v_add_u32 v9, s3, v9",
              "v_cmp_eq_u32 vcc, 1, v31", "v_mov_b32 v28, 0", "v_mov_b32 v29, 0"):
        e(t)
    a.label("K1_POLL")
    a.nop(2)
    for i in range(15):
        e(f"buffer_load_dwordx2 {vr(GA + 2 * i, 2)}, v30, {sr(AGG, 4)}, 0 offen offset:{256 * i} sc0 sc1", tag=('c', i))
    e("v_mov_b32 v7, 1")
    vm0(a)
    for i in range(15):
        e(f"s_cmp_le_u32 s{sR}, {i}")
        e("s_cbranch_scc1 K1_CHKDONE")
        e(f"v_and_b32 v7, v7, v{GA + 2 * i}")
    a.label("K1_CHKDONE")
    a.nop(2)
    e("v_cmp_eq_u32 s[6:7], 1, v7")
    e("s_cmp_eq_u64 s[6:7], -1")
    e("s_cbranch_scc1 K1_POLLDONE")
    e("s_sleep 2")
    e("s_branch K1_POLL")
    a.label("K1_POLLDONE")
    a.nop(2)
    st.stamp("L polled")
    for i in range(15):
        e(f"s_cmp_le_u32 s{sR}, {i}")
        e("s_cbranch_scc1 K1_CARRYDONE")
        gr, gi = GA + 2 * i, GA + 1 + 2 * i
        e(f"v_fma_f32 v{gr}, v16, v28, v{gr}")
        e(f"v_fma_f32 v{gi}, v16, v29, v{gi}")
        e(f"v_fma_f32 v{gr}, -v17, v29, v{gr}")
        e(f"v_fma_f32 v{gi}, v17, v28, v{gi}")
        e(f"v_mov_b32 v28, v{gr}")
        e(f"v_mov_b32 v29, v{gi}")
    a.label("K1_CARRYDONE")
    a.nop(2)
    for t in ("v_fma_f32 v24, v26, v28, v24", "v_fma_f32 v25, v26, v29, v25",
              "v_fma_f32 v24, -v27, v29, v24", "v_fma_f32 v25, v27, v28, v25",
              "v_mul_f32 v26, v12, v24", "v_mul_f32 v27, v12, v25",
              "v_fma_f32 v26, -v13, v25, v26", "v_fma_f32 v27, v13, v24, v27"):
        e(t)
    vm0(a)
    e("s_cmp_ge_u32 s56, 448")
    e("s_cbranch_scc1 K1_JOBC2")
    e("v_lshrrev_b32 v28, 4, v1")
    e("v_bfe_u32 v29, v1, 2, 2")
    e("v_lshl_add_u32 v28, v28, 3, v29")
    e("v_lshlrev_b32 v28, 7, v28")
    e("v_and_b32 v29, 3, v1")
    e("v_lshl_add_u32 v28, v29, 3, v28")
    e("v_add_u32 v28, s57, v28")
    for mt in range(4):
        for h in range(2):
            e(f"ds_read_b64_tr_b16 {vr(GA + 4 * mt + 2 * h, 2)}, v28 offset:{512 * h + 32 * mt}", tag=('jt', mt))
    for mt in range(4):
        a.wait_lg(tag=('jt', mt))
        e(f"buffer_store_dwordx4 {vr(GA + 4 * mt, 4)}, v6, {sr(WSD, 4)}, s58 offen offset:{1024 * mt} {JST}", tag='jo')
    e("s_branch K1_JOBDONE")
    a.label("K1_JOBC2")
    a.nop(2)
    e("s_cmp_ge_u32 s56, 960")
    e("s_cbranch_scc1 K1_JOBDONE")
    e("v_add_u32 v28, s57, v6")
    e(f"ds_read_b128 {vr(GA, 4)}, v28", tag='jt')
    e(f"ds_read_b128 {vr(GA + 4, 4)}, v28 offset:1024", tag='jt')
    a.wait_lg(n=0)
    e(f"buffer_store_dwordx4 {vr(GA, 4)}, v6, {sr(WSD, 4)}, s58 offen {JST}", tag='jo')
    e(f"buffer_store_dwordx4 {vr(GA + 4, 4)}, v6, {sr(WSD, 4)}, s58 offen offset:1024 {JST}", tag='jo')
    a.label("K1_JOBDONE")
    a.nop(2)
    e("v_mov_b32 v30, v5")
    e("v_mov_b32 v31, v9")
    for i in range(16):
        r, im = RAW + i, RAW + 16 + i
        fr, fi, nr, ni = (26, 27, 24, 25) if i % 2 == 0 else (24, 25, 26, 27)
        for t in (f"v_mul_f32 v{nr}, v10, v{fr}", f"v_mul_f32 v{ni}, v10, v{fi}",
                  f"v_fma_f32 v{nr}, -v11, v{fi}, v{nr}", f"v_fma_f32 v{ni}, v11, v{fr}, v{ni}",
                  f"v_add_f32 v{r}, v{r}, v{nr}", f"v_sub_f32 v{im}, v{im}, v{ni}",
                  f"v_cndmask_b32 v28, v{im}, v{r}, vcc",
                  "v_mov_b32_dpp v29, v28 quad_perm:[1,0,3,2] row_mask:0xf bank_mask:0xf",
                  f"v_cndmask_b32 v28, v{r}, v29, vcc", f"v_cndmask_b32 v29, v29, v{im}, vcc",
                  f"v_cvt_pk_bf16_f32 v{r}, v28, v29"):
            e(t)
        e(f"ds_write_b32 v2, v{r} offset:{128 * i}", tag='hw')
    a.wait_lg(n=0)
    for k in range(4):
        e(f"ds_read_b128 {vr(GA + 4 * k, 4)}, v30 offset:{1024 * k}", tag=('hr', k))
    for k in range(4):
        a.wait_lg(tag=('hr', k))
        e(f"buffer_store_dwordx4 {vr(GA + 4 * k, 4)}, v31, {sr(WSD, 4)}, 0 offen offset:{(k & 1) * 128 + (k >> 1) * 1024}", tag='hs')
    st.stamp("L end")
    st.dump(WSD, WS_STAMP, 2, shift=11)
    e("s_endpgm")

    a.label("K1_COMPUTE")
    a.nop(4)
    a.vm = []
    a.lg = []
    st.n = 1
    if int(os.environ.get('K1PRIO', '0')):
        e(f"s_setprio {int(os.environ.get('K1PRIO'))}")
    e(f"s_sub_u32 s{sW}, s{sW}, 4")
    e(f"s_lshl_b32 s3, s{sR}, 2")
    e(f"s_add_u32 s3, s3, s{sW}")
    e("s_lshl_b32 s3, s3, 15")
    if WS_XF:
        e(f"s_add_u32 s3, s3, {WS_XF}")
    for s in range(32):
        if s % 4 == 0:
            e(f"s_add_u32 s4, s3, {1024 * s}")
        e(f"buffer_load_dwordx4 {ar(32 + 4 * s, 4)}, v6, {sr(WSD, 4)}, s4 offen offset:{1024 * (s % 4)}", tag=('x', s))
    TOUCH = int(os.environ.get('K1TOUCH', '3'))
    if TOUCH & 1:
        e(f"s_and_b32 s4, s{sW}, 1")
        e("s_cmp_eq_u32 s4, 0")
        e(f"s_cselect_b32 s48, s{P_BRE}, s{P_BIM}")
        e(f"s_cselect_b32 s49, s{P_BRE + 1}, s{P_BIM + 1}")
        e("s_and_b32 s49, s49, 0xffff")
        e("s_mov_b32 s50, 524288")
        e("s_mov_b32 s51, 0x00020000")
        e(f"s_lshl_b32 s4, s{sC}, 5")
        e(f"s_lshl_b32 s5, s{sR}, 1")
        e("s_add_u32 s4, s4, s5")
        e(f"s_lshr_b32 s5, s{sW}, 1")
        e("s_add_u32 s4, s4, s5")
        e("s_lshl_b32 s4, s4, 10")
        e("buffer_load_dwordx4 v[92:95], v6, s[48:51], s4 offen", tag='touch')

    def touch_job():
        e("s_lshl_b32 s56, s2, 2")
        e(f"s_add_u32 s56, s56, s{sW}")
        e("s_cmp_ge_u32 s56, 448")
        e("s_cbranch_scc1 K1_TJC")
        srd(a, 48, P_WD, 1835008)
        e("s_lshr_b32 s4, s56, 3")
        e("s_and_b32 s5, s56, 7")
        e("s_lshl_b32 s6, s4, 15")
        e("s_lshl_b32 s7, s5, 7")
        e("s_add_u32 s6, s6, s7")
        e("v_lshrrev_b32 v9, 3, v1")
        e("v_lshlrev_b32 v9, 10, v9")
        e("v_and_b32 v10, 7, v1")
        e("v_lshl_add_u32 v9, v10, 4, v9")
        for i in range(4):
            e(f"s_add_u32 s20, s6, {8192 * i}")
            e("buffer_load_dwordx4 v[92:95], v9, s[48:51], s20 offen", tag='touch')
        e("s_branch K1_TJD")
        a.label("K1_TJC")
        a.nop(2)
        e("s_cmp_ge_u32 s56, 960")
        e("s_cbranch_scc1 K1_TJD")
        e("s_sub_u32 s3, s56, 448")
        e("s_lshr_b32 s4, s3, 6")
        e("s_bfe_u32 s5, s3, 0x40002")
        e("s_bfe_u32 s6, s3, 0x10001")
        e("s_and_b32 s7, s3, 1")
        e("s_cmp_eq_u32 s6, 0")
        e(f"s_cselect_b32 s48, s{P_CRE}, s{P_CIM}")
        e(f"s_cselect_b32 s49, s{P_CRE + 1}, s{P_CIM + 1}")
        e("s_and_b32 s49, s49, 0xffff")
        e("s_mov_b32 s50, 524288")
        e("s_mov_b32 s51, 0x00020000")
        e("s_lshl_b32 s20, s4, 6")
        e("s_lshl_b32 s21, s7, 5")
        e("s_add_u32 s20, s20, s21")
        e("v_and_b32 v9, 15, v1")
        e("v_add_u32 v9, s20, v9")
        e("v_lshlrev_b32 v9, 10, v9")
        e("v_lshrrev_b32 v10, 4, v1")
        e("v_lshl_add_u32 v9, v10, 4, v9")
        e("s_lshl_b32 s20, s5, 6")
        e("s_add_u32 s21, s20, 16384")
        e("buffer_load_dwordx4 v[92:95], v9, s[48:51], s20 offen", tag='touch')
        e("buffer_load_dwordx4 v[92:95], v9, s[48:51], s21 offen", tag='touch')
        a.label("K1_TJD")
        a.nop(2)

    e(f"v_add_u32 v5, 0x10000, v6")
    for t in (f"s_lshl_b32 s3, s{sW}, 5", "v_add_u32 v7, s3, v3", f"v_mul_u32_u24 v7, {SC_PITCH}, v7",
              "v_lshl_add_u32 v7, v4, 4, v7", f"v_add_u32 v7, {K1_SCAN}, v7",
              f"s_lshl_b32 s3, s{sR}, 1", f"s_lshr_b32 s4, s{sW}, 1", "s_add_u32 s3, s3, s4",
              "s_mul_i32 s3, s3, 88", "s_add_u32 s3, s3, 32", "s_lshl_b32 s3, s3, 12",
              f"s_and_b32 s4, s{sW}, 1", "s_lshl_b32 s4, s4, 11", "s_add_u32 s3, s3, s4",
              f"s_add_u32 s3, s3, {WS_AF}",
              "v_lshrrev_b32 v2, 4, v3", "v_lshlrev_b32 v2, 10, v2", "v_and_b32 v8, 15, v3",
              "v_lshl_add_u32 v2, v8, 4, v2", "v_add_u32 v2, s3, v2",
              f"s_mul_i32 s46, s{sC}, 14", "v_add_u32 v8, s46, v4"):
        e(t)
    e("v_bfe_u32 v9, v3, 1, 3")
    e("v_lshlrev_b32 v10, 10, v3")
    for k in range(4):
        e(f"v_add_u32 v11, {2 * k}, v4")
        e("v_xor_b32 v11, v11, v9")
        e("v_lshl_add_u32 v11, v11, 4, v10")
        e(f"v_add_u32 v{84 + k}, {32768 * (TORD.index(7) % 3)}, v11")
        e(f"v_add_u32 v{88 + k}, {32768 * (TORD.index(8) % 3)}, v11")
    ACC = [32, 48]
    D = int(os.environ.get('K1D', '5'))
    RING = 8

    def ops_dump(acc, part):
        return [(lambda j=j: e(f"ds_write_b128 v7, {vr(acc + 4 * j, 4)} offset:{part * 128 + j * 32}", tag='w')) for j in range(4)]

    def ops_glu(acc, T):
        g, u = acc, acc + 8
        o = 64 + 4 * (T & 1)
        t0 = 72
        L = []
        w = L.append
        for p in range(4):
            w(lambda p=p: e(f"v_cvt_pk_bf16_f32 v{t0 + p}, v{g + 2 * p}, v{g + 2 * p + 1}"))
            w(lambda p=p: e(f"v_cvt_pk_bf16_f32 v{t0 + 4 + p}, v{u + 2 * p}, v{u + 2 * p + 1}"))
        for p in range(4):
            w(lambda p=p: e(f"v_lshlrev_b32 v{g + 2 * p}, 16, v{t0 + p}"))
            w(lambda p=p: e(f"v_and_b32 v{g + 2 * p + 1}, 0xffff0000, v{t0 + p}"))
        for i in range(8):
            w(lambda i=i: e(f"v_mul_f32 v{g + i}, {NLOG2E:#x}, v{g + i}"))
        for i in range(8):
            w(lambda i=i: e(f"v_exp_f32 v{g + i}, v{g + i}"))
            p = i // 2
            if i % 2 == 0:
                w(lambda p=p: e(f"v_lshlrev_b32 v{u + 2 * p}, 16, v{t0 + 4 + p}"))
            else:
                w(lambda p=p: e(f"v_and_b32 v{u + 2 * p + 1}, 0xffff0000, v{t0 + 4 + p}"))
        for i in range(8):
            w(lambda i=i: e(f"v_add_f32 v{g + i}, 1.0, v{g + i}"))
        for i in range(8):
            w(lambda i=i: e(f"v_rcp_f32 v{g + i}, v{g + i}"))
        w(lambda: e(f"v_add_u32 v80, {2 * T}, v8"))
        w(lambda: e("v_lshrrev_b32 v81, 2, v80"))
        w(lambda: e("v_and_b32 v80, 3, v80"))
        w(lambda: e("v_lshl_add_u32 v81, v81, 12, v2"))
        w(lambda: e(f"v_lshl_add_u32 v{82 + (T & 1)}, v80, 8, v81"))
        for p in range(4):
            w(lambda p=p: e(f"v_cvt_pk_bf16_f32 v{t0 + p}, v{g + 2 * p}, v{g + 2 * p + 1}"))
        for p in range(4):
            w(lambda p=p: e(f"v_lshlrev_b32 v{g + 2 * p}, 16, v{t0 + p}"))
            w(lambda p=p: e(f"v_and_b32 v{g + 2 * p + 1}, 0xffff0000, v{t0 + p}"))
        for i in range(8):
            w(lambda i=i: e(f"v_mul_f32 v{g + i}, v{g + i}, v{u + i}"))
        for p in range(4):
            w(lambda p=p: e(f"v_cvt_pk_bf16_f32 v{o + p}, v{g + 2 * p}, v{g + 2 * p + 1}"))
        SF = os.environ.get('K1ST', '')
        if SF != 'none':
            w(lambda: e(f"buffer_store_dwordx4 {vr(o, 4)}, v{82 + (T & 1)}, {sr(WSD, 4)}, 0 offen {SF}", tag='hg'))
        return L

    def frag(n):
        return ar(4 * (n % RING), 4)

    SEQ = []
    for s in range(32):
        SEQ += [(0, s), (1, s)]
    for idx in range(2, 9):
        SEQ += [(idx, s) for s in range(32)]
    NF = len(SEQ)
    ACC3 = {0: 32, 1: 48}
    for idx in range(2, 9):
        ACC3[idx] = 16 if idx == 2 else (32 if idx % 2 == 1 else 48)

    def issue_read(n):
        idx, s = SEQ[n]
        slot = idx % 3
        if s == 0 and idx != 1:
            e("s_barrier")
            st.stamp(f"barrier {idx}")
        base = 5 if slot == 2 else 6
        off = (slot & 1) * 32768 + s * 1024 if slot < 2 else s * 1024
        if TORD[idx] >= 7:
            base = (84 if TORD[idx] == 7 else 88) + (s & 3)
            off = (s >> 2) * 128
        e(f"ds_read_b128 {frag(n)}, v{base} offset:{off}", tag=('f', n))

    for n in range(D):
        issue_read(n)
    pend = []
    for n in range(NF):
        idx, s = SEQ[n]
        acc = ACC3[idx]
        if s == 0 and idx >= 2:
            assert not pend
            prevs = [0, 1] if idx == 2 else [idx - 1]
            for p in prevs[::-1]:
                pT = TORD[p]
                pend += ops_dump(ACC3[p], pT - 7) if pT >= 7 else ops_glu(ACC3[p], pT)
        if idx == 0:
            a.wait_vm(tag=('x', s))
        if idx == int(os.environ.get('K1TJ', '3')) and s == 1 and TOUCH & 2:
            touch_job()
        a.wait_lg(tag=('f', n))
        c = "0" if s == 0 else vr(acc, 16)
        e(f"v_mfma_f32_32x32x16_bf16 {vr(acc, 16)}, {frag(n)}, {ar(32 + 4 * s, 4)}, {c}")
        if s >= 2 and idx >= 2:
            rem = max(1, (32 - D) - s)
            k = (len(pend) + rem - 1) // rem if pend else 0
            for _ in range(k):
                if pend:
                    pend.pop(0)()
        if n + D < NF:
            if SEQ[n + D][1] == 0 and SEQ[n + D][0] >= 2:
                assert not pend
                a.wait_lg(tag='w')
            issue_read(n + D)
    st.stamp("main end")
    for op in ops_glu(ACC3[8], TORD[8]):
        op()
    st.stamp("end")
    st.rt(31)
    st.dump(WSD, WS_STAMP, 2, shift=11)
    a.label("K1_END")
    e("s_endpgm")
    return a


K2_LDS = 131072
ROT = int(os.environ.get('K2ROT', '1'))
K2_START = [0, 11, 22, 32, 44, 55, 66, 77]
K2_CNT = [11, 11, 10, 12, 11, 11, 11, 11]


def gen_k2():
    a = Asm()
    e = a.emit
    WSD, XS, DSK, OUT = 8, 24, 28, 32
    sRB, sCB, sW = 40, 41, 42
    e("s_cmp_ge_u32 s2, 256")
    e("s_cbranch_scc1 K2_END")
    load_kernargs(a)
    e("v_and_b32 v1, 63, v0")
    e("v_lshrrev_b32 v2, 6, v0")
    e(f"v_readfirstlane_b32 s{sW}, v2")
    e("s_and_b32 s3, s2, 7")
    e("s_lshr_b32 s4, s2, 3")
    e(f"s_and_b32 s{sCB}, s4, 7")
    e("s_lshr_b32 s4, s4, 3")
    e("s_lshl_b32 s3, s3, 2")
    e(f"s_add_u32 s{sRB}, s3, s4")
    e("v_lshlrev_b32 v6, 4, v1")
    e(f"s_mul_i32 s44, s{sRB}, {88 * 4096}")
    e(f"s_add_u32 s44, s44, {WS_AF}")
    e(f"s_mul_i32 s45, s{sCB}, {88 * 4096}")
    e(f"s_add_u32 s45, s45, {WS_W2}")
    e(f"s_lshl_b32 s3, s{sW}, 15")
    e("s_add_u32 s46, s44, s3")
    e("s_add_u32 s47, s45, s3")
    e(f"s_mul_i32 s3, s{sW}, {14 * 4096}")
    e(f"s_add_u32 s3, s3, {32 * 4096}")
    e("s_add_u32 s48, s44, s3")
    e("s_add_u32 s49, s45, s3")
    lgk0(a)
    st = Stamper(a, 31, "k2")
    st.stamp("start")
    st.rt(30)
    srd(a, WSD, P_WS, WS_SIZE)
    NBUF = int(os.environ.get("K2NB", "11"))
    NSTEP = 22

    def buf(n, off):
        b = n % NBUF
        return vr(32 + 32 * b + off, 4) if b < 5 else ar(128 + 32 * (b - 5) + off, 4)

    def issue_loads(n):
        sa, sw, j = (46, 47, n) if n < 8 else (48, 49, n - 8)
        e(f"s_add_u32 s7, s{sw}, {4096 * j}")
        e(f"s_add_u32 s20, s{sa}, {4096 * j}")
        for t in range(4):
            e(f"buffer_load_dwordx4 {buf(n, 4 * t)}, v6, {sr(WSD, 4)}, s7 offen offset:{1024 * t}", tag=('l', n))
            e(f"buffer_load_dwordx4 {buf(n, 16 + 4 * t)}, v6, {sr(WSD, 4)}, s20 offen offset:{1024 * t}", tag=('l', n))

    PF = min(NBUF - 1, 7)
    for n in range(PF):
        issue_loads(n)
    srd(a, XS, P_X, 2097152)
    srd(a, DSK, P_DSK, 1024)
    srd(a, OUT, P_OUT, 4194304)
    e("v_and_b32 v3, 15, v1")
    e("v_lshrrev_b32 v4, 4, v1")
    e(f"s_lshl_b32 s3, s{sRB}, 6")
    e(f"s_lshl_b32 s4, s{sW}, 4")
    e("s_add_u32 s3, s3, s4")
    e("v_add_u32 v8, s3, v3")
    e(f"s_lshl_b32 s4, s{sCB}, 6")
    e("v_lshl_add_u32 v14, v4, 2, s4")
    e("v_lshlrev_b32 v11, 10, v8")
    e("v_lshl_add_u32 v11, v14, 1, v11")
    e("v_lshlrev_b32 v12, 1, v14")
    e("v_lshlrev_b32 v13, 3, v8")
    e(f"v_add_u32 v13, {WS_STATS}, v13")
    e(f"s_lshl_b32 s3, s{sW}, 12")
    e("v_add_u32 v9, s3, v6")
    e("v_add_u32 v10, 0x10000, v9")
    e(f"s_lshl_b32 s3, s{sW}, 14")
    e("v_add_u32 v15, s3, v6")
    e("v_add_u32 v16, 0x10000, v15")
    XR, DR, SR_ = 192 + 32, 192 + 40, 192 + 48
    YS = 192

    def epi_loads():
        for mt in range(4):
            e(f"buffer_load_dwordx2 {vr(XR + 2 * mt, 2)}, v11, {sr(XS, 4)}, 0 offen offset:{32 * mt}", tag='e')
            e(f"buffer_load_dwordx2 {vr(DR + 2 * mt, 2)}, v12, {sr(DSK, 4)}, 0 offen offset:{32 * mt}", tag='e')
        e(f"buffer_load_dwordx2 {vr(SR_, 2)}, v13, {sr(WSD, 4)}, 0 offen", tag='e')

    def write_part(accb, base):
        for nt in range(4):
            for mt in range(4):
                e(f"ds_write_b128 v{base}, {ar(accb + 16 * nt + 4 * mt, 4)} offset:{nt * 16384 + mt * 1024}", tag='w')

    def read_sum(base, dst):
        for mt in range(4):
            e(f"ds_read_b128 {vr(dst + 4 * mt, 4)}, v{base} offset:{mt * 1024}", tag=('r', 0))
        for sidx in range(1, 4):
            for mt in range(4):
                t = 244 + 4 * (mt % 3)
                e(f"ds_read_b128 {vr(t, 4)}, v{base} offset:{sidx * 4096 + mt * 1024}", tag=('r', sidx, mt))
                a.wait_lg(tag=('r', sidx, mt))
                for i in range(4):
                    e(f"v_add_f32 v{dst + 4 * mt + i}, v{dst + 4 * mt + i}, v{t + i}")

    nxt = PF
    for n in range(NSTEP):
        while nxt < NSTEP and nxt <= n + NBUF - 1 and len(a.vm) + 8 <= 63:
            issue_loads(nxt)
            nxt += 1
        if n == 0:
            epi_loads()
        if n == 12:
            for m in range(4):
                for p in range(2):
                    xr, dr = XR + 2 * m + p, DR + 2 * m + p
                    y0, y1 = YS + 4 * m + 2 * p, YS + 1 + 4 * m + 2 * p
                    x0, x1 = YS + 16 + 4 * m + 2 * p, YS + 17 + 4 * m + 2 * p
                    for t in (f"v_lshlrev_b32 v{x0}, 16, v{xr}", f"v_and_b32 v{x1}, 0xffff0000, v{xr}",
                              f"v_sub_f32 v244, v{x0}, v{SR_}", f"v_sub_f32 v245, v{x1}, v{SR_}", "v_cvt_pk_bf16_f32 v246, v244, v245",
                              "v_lshlrev_b32 v244, 16, v246", "v_and_b32 v245, 0xffff0000, v246",
                              f"v_mul_f32 v244, v244, v{SR_ + 1}", f"v_mul_f32 v245, v245, v{SR_ + 1}", "v_cvt_pk_bf16_f32 v246, v244, v245",
                              "v_lshlrev_b32 v244, 16, v246", "v_and_b32 v245, 0xffff0000, v246",
                              f"v_lshlrev_b32 v247, 16, v{dr}", f"v_and_b32 v248, 0xffff0000, v{dr}",
                              "v_mul_f32 v244, v244, v247", "v_mul_f32 v245, v245, v248", "v_cvt_pk_bf16_f32 v246, v244, v245",
                              f"v_lshlrev_b32 v{y0}, 16, v246", f"v_and_b32 v{y1}, 0xffff0000, v246"):
                        e(t)
        if n == 10:
            write_part(0, 9)
        a.wait_vm(tag=('l', n))
        if n % 2 == 0:
            st.stamp(f"step {n}")
        accb = 0 if n < 8 else 64
        for nt in range(4):
            for mt in range(4):
                d = accb + 16 * nt + 4 * mt
                c = "0" if n in (0, 8) else ar(d, 4)
                e(f"v_mfma_f32_16x16x32_bf16 {ar(d, 4)}, {buf(n, 4 * mt)}, {buf(n, 16 + 4 * nt)}, {c}")
    st.stamp("main end")
    write_part(64, 10)
    e("v_lshlrev_b32 v11, 1, v11")
    a.wait_lg(n=0)
    e("s_barrier")
    DS = 32
    for sidx in range(4):
        for mt in range(4):
            e(f"ds_read_b128 {vr(DS + 16 * sidx + 4 * mt, 4)}, v16 offset:{sidx * 4096 + mt * 1024}", tag=('r', sidx))
    for sidx in range(4):
        for mt in range(4):
            e(f"ds_read_b128 {vr(128 + 16 * sidx + 4 * mt, 4)}, v15 offset:{sidx * 4096 + mt * 1024}", tag=('ry', sidx))
    a.wait_lg(tag=('r', 1))
    for i in range(16):
        e(f"v_add_f32 v{DS + i}, v{DS + i}, v{DS + 16 + i}")
    a.wait_lg(tag=('r', 3))
    for i in range(16):
        e(f"v_add_f32 v{DS + 32 + i}, v{DS + 32 + i}, v{DS + 48 + i}")
    for i in range(16):
        e(f"v_add_f32 v{DS + i}, v{DS + i}, v{DS + 32 + i}")
    st.stamp("reduced")
    T0, T1 = 96, 112
    for p in range(8):
        e(f"v_cvt_pk_bf16_f32 v{T0 + p}, v{DS + 2 * p}, v{DS + 2 * p + 1}")
    for p in range(8):
        e(f"v_lshlrev_b32 v{DS + 2 * p}, 16, v{T0 + p}")
        e(f"v_and_b32 v{DS + 2 * p + 1}, 0xffff0000, v{T0 + p}")
    for i in range(16):
        e(f"v_mul_f32 v{T1 + i}, {NLOG2E:#x}, v{DS + i}")
    for i in range(16):
        e(f"v_exp_f32 v{T1 + i}, v{T1 + i}")
    for i in range(16):
        e(f"v_add_f32 v{T1 + i}, 1.0, v{T1 + i}")
    for i in range(16):
        e(f"v_rcp_f32 v{T1 + i}, v{T1 + i}")
    for i in range(16):
        e(f"v_mul_f32 v{T1 + i}, v{DS + i}, v{T1 + i}")
    for p in range(8):
        e(f"v_cvt_pk_bf16_f32 v{T0 + p}, v{T1 + 2 * p}, v{T1 + 2 * p + 1}")
    for p in range(8):
        e(f"v_lshlrev_b32 v{DS + 2 * p}, 16, v{T0 + p}")
        e(f"v_and_b32 v{DS + 2 * p + 1}, 0xffff0000, v{T0 + p}")
    a.wait_lg(n=0)
    for i in range(16):
        e(f"v_add_f32 v{128 + i}, v{128 + i}, v{144 + i}")
    for i in range(16):
        e(f"v_add_f32 v{160 + i}, v{160 + i}, v{176 + i}")
    for i in range(16):
        e(f"v_add_f32 v{128 + i}, v{128 + i}, v{160 + i}")
    for i in range(16):
        e(f"v_add_f32 v{YS + i}, v{128 + i}, v{YS + i}")
    for i in range(16):
        e(f"v_mul_f32 v{DS + i}, v{YS + i}, v{DS + i}")
    for i in range(16):
        e(f"v_add_f32 v{DS + i}, v{YS + 16 + i}, v{DS + i}")
    for m in range(4):
        e(f"buffer_store_dwordx4 {vr(DS + 4 * m, 4)}, v11, {sr(OUT, 4)}, 0 offen offset:{64 * m}", tag='o')
    st.stamp("end")
    st.rt(31)
    st.dump(WSD, WS_STAMP + 0x100000, 2, shift=11)
    a.label("K2_END")
    e("s_endpgm")
    return a


def kd(name, nfv, acc):
    return f""".p2align 6
.amdhsa_kernel {name}
  .amdhsa_next_free_vgpr {nfv}
  .amdhsa_next_free_sgpr 102
  .amdhsa_accum_offset {acc}
  .amdhsa_group_segment_fixed_size 0
  .amdhsa_kernarg_size 128
  .amdhsa_user_sgpr_count 2
  .amdhsa_user_sgpr_kernarg_segment_ptr 1
  .amdhsa_system_sgpr_workgroup_id_x 1
  .amdhsa_float_denorm_mode_32 3
  .amdhsa_float_denorm_mode_16_64 3
.end_amdhsa_kernel
"""


def main():
    k0 = gen_k0()
    k1 = gen_k1_full()
    k2 = gen_k2()
    out = []
    out.append(f"; @launch kernel=ssm_k0_kernel grid=({K0_GRID},1,1) block=(256,1,1) lds={K0_LDS}")
    out.append(f"; @launch kernel=ssm_k1_kernel grid=(256,1,1) block=(512,1,1) lds={K1_LDS}")
    out.append(f"; @launch kernel=ssm_k2_kernel grid=(256,1,1) block=(256,1,1) lds={K2_LDS}")
    out.append('.amdgcn_target "amdgcn-amd-amdhsa--gfx950"')
    out.append(".text")
    for nm, k in (("ssm_k0_kernel", k0), ("ssm_k1_kernel", k1), ("ssm_k2_kernel", k2)):
        out.append(f".globl {nm}")
        out.append(".p2align 8")
        out.append(f".type {nm},@function")
        out.append(f"{nm}:")
        out.append(k.text())
    out.append('.section .rodata,"a"')
    out.append(kd("ssm_k0_kernel", 72, 72))
    out.append(kd("ssm_k1_kernel", 256, 96))
    out.append(kd("ssm_k2_kernel", 512, 256))
    txt = "\n".join(out)
    path = sys.argv[1] if len(sys.argv) > 1 else f"cdna_kernels/{NAME}.s"
    open(path, "w").write(txt)
    for nm, k in (("k0", k0), ("k1", k1), ("k2", k2)):
        print(nm, "lines", len(k.lines), "nops", k.nops)


if __name__ == "__main__":
    main()
```
